```python
import torch

def _softmax(x, axis=-1):
    return torch.softmax(x, dim=axis)
def _gelu(x):
    return torch.nn.functional.gelu(x, approximate="tanh")
def _silu(x):
    return torch.nn.functional.silu(x)
def _sigmoid(x):
    return torch.sigmoid(x)
def _layernorm(x, axis=-1, eps=1e-5):
    m = x.mean(dim=axis, keepdim=True)
    v = x.var(dim=axis, keepdim=True, unbiased=False)
    return (x - m) / torch.sqrt(v + eps)
def _scatter_add(tgt, idx, src, axis=0):
    return tgt.clone().index_add_(axis, idx, src)
def _segment_sum(src, seg, n):
    out = torch.zeros((n,) + src.shape[1:], dtype=src.dtype)
    return out.index_add_(0, seg, src)
def _pad(x, pw):
    flat = tuple(v for pair in reversed(pw) for v in pair)
    return torch.nn.functional.pad(x, flat)

kernel_name = 'recurrent_scan__sliding_block_cached__mixer_token_mlp__decode'

def setup_inputs():

    _w = (lambda a: (lambda t: t.to(torch.bfloat16) if t.is_floating_point() else t)(torch.as_tensor(a)))
    def _A_setup():
        B, Sq, D = 1, 1, 640
        Hq, Hkv, Sk, Dh = 32, 32, 32768, 192
        assert Hq % Hkv == 0, (Hq, Hkv)
        return {
            "x": _w((lambda *s: torch.randn(*s, dtype=torch.bfloat16) * 0.1)(B, Sq, D)),
            "k_cache": _w((lambda *s: torch.randn(*s, dtype=torch.bfloat16) * 0.8)(B, Hkv, Sk, Dh)),
            "v_cache": _w((lambda *s: torch.randn(*s, dtype=torch.bfloat16) * 3.2)(B, Hkv, Sk, Dh)),
            "wq": _w((lambda *s: torch.randn(*s, dtype=torch.bfloat16) * 0.8)(D, Hq * Dh) * (D ** -0.5)),
            "wo": _w((lambda *s: torch.randn(*s, dtype=torch.bfloat16) * 3.2)(Hq * Dh, D) * ((Hq * Dh) ** -0.5)),
        }
    _A_in = _A_setup()

    def _B_setup():
        B, S, D, F = 1, 1, 640, 1536
        return {
            "x": _w((lambda *s: torch.randn(*s, dtype=torch.bfloat16) * 0.1)(B, S, D)),
            "w1": _w((lambda *s: torch.randn(*s, dtype=torch.bfloat16) * 3.2)(S, F) * (S ** -0.5)),
            "b1": _w((lambda *s: torch.randn(*s, dtype=torch.bfloat16) * 3.2)(F) * 0.02),
            "w2": _w((lambda *s: torch.randn(*s, dtype=torch.bfloat16) * 3.2)(F, S) * (F ** -0.5)),
            "b2": _w((lambda *s: torch.randn(*s, dtype=torch.bfloat16) * 3.2)(S) * 0.02),
        }
    _B_in = _B_setup()

    return {
        "A_x": _A_in["x"],
        "A_k_cache": _A_in["k_cache"],
        "A_v_cache": _A_in["v_cache"],
        "A_wq": _A_in["wq"],
        "A_wo": _A_in["wo"],
        "B_x": _B_in["x"],
        "B_w1": _B_in["w1"],
        "B_b1": _B_in["b1"],
        "B_w2": _B_in["w2"],
        "B_b2": _B_in["b2"],
    }

def reference(A_x, A_k_cache, A_v_cache, A_wq, A_wo, B_x, B_w1, B_b1, B_w2, B_b2):
    def _A_ref(x, k_cache, v_cache, wq, wo):
        B, Sq, D = x.shape
        Hq, Dh = 32, 192
        Hkv, Sk = k_cache.shape[1], k_cache.shape[2]
        W = min(4096, max(256, Sk // 4))
        rep = Hq // Hkv
        q = (lambda x, *d: x.permute(*d))((x @ wq).reshape(B, Sq, Hq, Dh), 0, 2, 1, 3)
        k = (lambda x, n, axis: torch.repeat_interleave(x, n, dim=axis))(k_cache[:, :, Sk - W:, :], rep, axis=1)
        v = (lambda x, n, axis: torch.repeat_interleave(x, n, dim=axis))(v_cache[:, :, Sk - W:, :], rep, axis=1)
        scores = torch.einsum("bhqd,bhkd->bhqk", q, k) * (Dh ** -0.5)
        p = _softmax(scores, axis=-1)
        o = torch.einsum("bhqk,bhkd->bhqd", p, v)
        return (lambda x, *d: x.permute(*d))(o, 0, 2, 1, 3).reshape(B, Sq, Hq * Dh) @ wo

    def _B_ref(x, w1, b1, w2, b2):
        B, S, D = x.shape
        h = _layernorm(x, axis=-1)
        u = torch.einsum("bsd,sf->bdf", h, w1) + b1
        u = _gelu(u)
        y = torch.einsum("bdf,fs->bds", u, w2) + b2
        return (lambda x, *d: x.permute(*d))(y, 0, 2, 1)

    x = A_x
    xn = _layernorm(x, axis=-1)
    s = _A_ref(xn, A_k_cache, A_v_cache, A_wq, A_wo)
    g = _silu(_B_ref(xn, B_w1, B_b1, B_w2, B_b2))
    return x + s * g
```

```python
import struct, sys
NAME = "recurrent_scan__sliding_block_cached__mixer_token_mlp__decode"
R = 10

def f2u(x):
    return struct.unpack("<I", struct.pack("<f", x))[0]
def fh(x):
    return "0x%08x" % f2u(x)

LOG2E = 1.4426950408889634
out = []
def E(s):
    out.append("    " + s)
def L(s):
    out.append(s + ":")

class VM:
    def __init__(self):
        self.q = []
    def issue(self, tag):
        self.q.append(tag)
    def wait(self, tag):
        if tag not in self.q:
            return
        i = len(self.q) - 1 - self.q[::-1].index(tag)
        n = len(self.q) - 1 - i
        assert n <= 63
        E("s_waitcnt vmcnt(%d)" % n)
        self.q = self.q[i + 1:]
    def drain(self):
        E("s_waitcnt vmcnt(0)")
        self.q = []

def srd(d, p, nbytes):
    E("s_mov_b32 s%d, s%d" % (d, p))
    E("s_and_b32 s%d, s%d, 0xffff" % (d + 1, p + 1))
    E("s_mov_b32 s%d, 0x%x" % (d + 2, nbytes))
    E("s_mov_b32 s%d, 0x00020000" % (d + 3))

def rb(vd, vs):
    E("v_cvt_pk_bf16_f32 v%d, v%d, v%d" % (vd, vs, vs))
    E("v_lshlrev_b32 v%d, 16, v%d" % (vd, vd))

def wave_sum(vin, vt, sa):
    E("s_nop 1")
    E("v_add_f32_dpp v%d, v%d, v%d quad_perm:[1,0,3,2] row_mask:0xf bank_mask:0xf" % (vt, vin, vin))
    E("s_nop 1")
    E("v_add_f32_dpp v%d, v%d, v%d quad_perm:[2,3,0,1] row_mask:0xf bank_mask:0xf" % (vt, vt, vt))
    E("s_nop 1")
    E("v_add_f32_dpp v%d, v%d, v%d row_half_mirror row_mask:0xf bank_mask:0xf" % (vt, vt, vt))
    E("s_nop 1")
    E("v_add_f32_dpp v%d, v%d, v%d row_mirror row_mask:0xf bank_mask:0xf" % (vt, vt, vt))
    E("s_nop 1")
    for i in range(4):
        E("v_readlane_b32 s%d, v%d, %d" % (sa + i, vt, 16 * i))
    E("s_nop 1")
    E("v_mov_b32 v%d, s%d" % (vt, sa))
    for i in range(1, 4):
        E("v_add_f32 v%d, s%d, v%d" % (vt, sa + i, vt))

WS_BYTES = 1610612736
PART_OFF = 0
G_OFF = 262144
SP_OFF = 262144 + 4096

XN = 0
HH = 10240
RED = 20480
QB = 45056
ML = 45440
YP = 45696
LDS1 = 46080

def layernorm(xs, tmp, sa, outregs):
    t0, t1, t2, t3, t4, t5 = tmp[:6]
    E("v_add_f32 v%d, v%d, v%d" % (t0, xs[0], xs[1]))
    for i in range(2, 10):
        E("v_add_f32 v%d, v%d, v%d" % (t0, t0, xs[i]))
    wave_sum(t0, t1, sa)
    E("v_mul_f32 v%d, %s, v%d" % (t1, fh(1.0 / 640), t1))
    E("v_sub_f32 v%d, v%d, v%d" % (t2, xs[0], t1))
    E("v_mul_f32 v%d, v%d, v%d" % (t0, t2, t2))
    for i in range(1, 10):
        E("v_sub_f32 v%d, v%d, v%d" % (t2, xs[i], t1))
        E("v_fmac_f32 v%d, v%d, v%d" % (t0, t2, t2))
    wave_sum(t0, t2, sa)
    E("v_mul_f32 v%d, %s, v%d" % (t2, fh(1.0 / 640), t2))
    rb(t1, t1)
    rb(t2, t2)
    E("v_add_f32 v%d, %s, v%d" % (t2, fh(1e-5), t2))
    rb(t2, t2)
    E("v_sqrt_f32 v%d, v%d" % (t2, t2))
    E("s_nop 0")
    rb(t2, t2)
    E("v_rcp_f32 v%d, v%d" % (t3, t2))
    E("s_nop 0")
    for i in range(10):
        E("v_sub_f32 v%d, v%d, v%d" % (t4, xs[i], t1))
        rb(t4, t4)
        E("v_mul_f32 v%d, v%d, v%d" % (t5, t4, t3))
        E("v_fma_f32 v%d, -v%d, v%d, v%d" % (t4, t5, t2, t4))
        E("v_fma_f32 v%d, v%d, v%d, v%d" % (t5, t4, t3, t5))
        rb(outregs[i], t5)

def gemv_tile(base, vp, acc, t0, t1):
    for k in range(12):
        a = acc + (k // 4) * 8 + (k % 4) * 2
        E("v_lshlrev_b32 v%d, 16, v%d" % (t0, base + k))
        E("v_and_b32 v%d, 0xffff0000, v%d" % (t1, base + k))
        E("v_fmac_f32 v%d, v%d, v%d" % (a, vp, t0))
        E("v_fmac_f32 v%d, v%d, v%d" % (a + 1, vp, t1))

def kernel1():
    vm = VM()
    L(NAME + "_k1_kernel")
    E("s_cmp_ge_u32 s2, 256")
    E("s_cbranch_scc1 K1_END")
    E("s_load_dwordx16 s[16:31], s[0:1], 0")
    E("s_load_dwordx8 s[32:39], s[0:1], 64")
    E("s_load_dwordx2 s[40:41], s[0:1], 96")
    E("v_and_b32 v1, 63, v0")
    E("v_lshrrev_b32 v2, 3, v1")
    E("v_and_b32 v3, 7, v1")
    E("v_lshrrev_b32 v4, 6, v0")
    E("s_nop 0")
    E("v_readfirstlane_b32 s3, v4")
    E("s_and_b32 s4, s2, 7")
    E("s_lshr_b32 s5, s2, 3")
    E("s_and_b32 s6, s5, 3")
    E("s_lshl_b32 s4, s4, 2")
    E("s_add_u32 s4, s4, s6")
    E("s_lshr_b32 s5, s5, 2")
    E("s_waitcnt lgkmcnt(0)")
    sX, sK, sV, sWQ, sW1, sB1, sW2, sB2, sWS = 44, 48, 52, 56, 60, 64, 68, 72, 76
    srd(sX, 16, 1280)
    srd(sK, 18, 402653184)
    srd(sV, 20, 402653184)
    srd(sWQ, 22, 7864320)
    srd(sW1, 28, 3072)
    srd(sB1, 30, 3072)
    srd(sW2, 32, 3072)
    srd(sB2, 34, 2)
    srd(sWS, 40, WS_BYTES)
    E("s_mul_i32 s7, s4, 12582912")
    E("s_lshl_b32 s8, s5, 9")
    E("s_lshl_b32 s9, s3, 7")
    E("s_add_u32 s8, s8, s9")
    E("s_add_u32 s8, s8, 28672")
    E("s_mul_i32 s8, s8, 384")
    E("s_add_u32 s7, s7, s8")
    E("v_mul_u32_u24 v5, 384, v2")
    E("v_lshl_add_u32 v5, v3, 4, v5")
    E("v_add_u32 v5, s7, v5")
    E("s_lshl_b32 s8, s3, 3")
    E("v_add_u32 v6, s8, v2")
    E("v_mov_b32 v7, v6")
    E("v_mul_u32_u24 v6, 12288, v6")
    E("v_lshl_add_u32 v6, v3, 4, v6")
    E("s_mul_i32 s8, s4, 384")
    E("v_add_u32 v6, s8, v6")
    E("v_lshlrev_b32 v8, 2, v1")
    E("v_lshlrev_b32 v9, 2, v0")
    XR = 10
    for i in range(5):
        E("buffer_load_dword v%d, v8, s[%d:%d], 0 offen offset:%d" % (XR + i, sX, sX + 3, 256 * i))
        vm.issue("x%d" % i)
    W1R, B1R, W2R, B2R = 15, 18, 21, 24
    for i in range(3):
        E("buffer_load_dword v%d, v9, s[%d:%d], 0 offen offset:%d" % (W1R + i, sW1, sW1 + 3, 1024 * i)); vm.issue("w1")
        E("buffer_load_dword v%d, v9, s[%d:%d], 0 offen offset:%d" % (B1R + i, sB1, sB1 + 3, 1024 * i)); vm.issue("b1")
        E("buffer_load_dword v%d, v9, s[%d:%d], 0 offen offset:%d" % (W2R + i, sW2, sW2 + 3, 1024 * i)); vm.issue("w2")
    E("v_mov_b32 v25, 0")
    E("buffer_load_ushort v%d, v25, s[%d:%d], 0 offen" % (B2R, sB2, sB2 + 3)); vm.issue("b2")
    XS = list(range(26, 36))
    HS = list(range(36, 46))
    TMP = list(range(46, 56))
    ACC = 56
    XNV = 80
    QF = 100
    SC = 112
    RING = 128
    assert RING + 12 * R <= 256
    tiles = [("wq", t) for t in range(20)] + [("k", t) for t in range(16)] + [("v", t) for t in range(16)]
    def issue_tile(n):
        kind, t = tiles[n]
        base = RING + 12 * (n % R)
        if kind == "wq":
            E("s_mov_b32 s10, %d" % (t * 393216))
            vo, sr = 6, sWQ
        else:
            E("s_mov_b32 s10, %d" % (t * 3072))
            vo, sr = 5, (sK if kind == "k" else sV)
        for i in range(3):
            E("buffer_load_dwordx4 v[%d:%d], v%d, s[%d:%d], s10 offen offset:%d" % (base + 4 * i, base + 4 * i + 3, vo, sr, sr + 3, 128 * i))
            vm.issue("t%d" % n)
    for n in range(R):
        issue_tile(n)
    vm.wait("x4")
    for i in range(5):
        E("v_lshlrev_b32 v%d, 16, v%d" % (XS[2 * i], XR + i))
        E("v_and_b32 v%d, 0xffff0000, v%d" % (XS[2 * i + 1], XR + i))
    layernorm(XS, TMP, 84, XS)
    layernorm(XS, TMP, 84, HS)
    E("s_mul_i32 s8, s3, 2560")
    E("v_lshl_add_u32 v%d, v1, 3, s8" % TMP[0])
    for i in range(5):
        E("ds_write_b64 v%d, v[%d:%d] offset:%d" % (TMP[0], XS[2 * i], XS[2 * i + 1], XN + 512 * i))
        E("ds_write_b64 v%d, v[%d:%d] offset:%d" % (TMP[0], HS[2 * i], HS[2 * i + 1], HH + 512 * i))
    E("s_waitcnt lgkmcnt(0)")
    E("v_lshl_add_u32 v%d, v7, 2, s8" % TMP[0])
    for t in range(20):
        E("ds_read_b32 v%d, v%d offset:%d" % (XNV + t, TMP[0], XN + 128 * t))
    E("s_lshl_b32 s9, s2, 2")
    E("s_add_u32 s9, s9, s8")
    E("v_mov_b32 v%d, s9" % TMP[1])
    HD = HS[0:3]
    E("ds_read_b32 v%d, v%d offset:%d" % (HD[0], TMP[1], HH))
    E("ds_read_b32 v%d, v%d offset:%d" % (HD[1], TMP[1], HH + 1024))
    E("s_cmp_lt_u32 s2, 128")
    E("s_cselect_b32 s11, 2048, 0")
    E("v_add_u32 v%d, s11, v%d" % (TMP[1], TMP[1]))
    E("ds_read_b32 v%d, v%d offset:%d" % (HD[2], TMP[1], HH))
    vm.wait("b2")
    K1c = -2.0 * LOG2E * 0.7978845608028654
    K2c = K1c * 0.044715
    YA = HS[3:6]
    WF = HS[6:9]
    vk1 = HS[9]
    E("v_mov_b32 v%d, %s" % (vk1, fh(K1c)))
    E("s_mov_b32 s12, %s" % fh(K2c))
    for c in range(3):
        E("v_mov_b32 v%d, 0" % YA[c])
    E("s_waitcnt lgkmcnt(0)")
    t0, t1, t2 = TMP[0:3]
    for i in range(3):
        for half in range(2):
            for (dst, src) in ((WF[0], W1R + i), (WF[1], B1R + i), (WF[2], W2R + i)):
                if half == 0:
                    E("v_lshlrev_b32 v%d, 16, v%d" % (dst, src))
                else:
                    E("v_and_b32 v%d, 0xffff0000, v%d" % (dst, src))
            for c in range(3):
                E("v_mul_f32 v%d, v%d, v%d" % (t0, HD[c], WF[0]))
                rb(t0, t0)
                E("v_add_f32 v%d, v%d, v%d" % (t0, t0, WF[1]))
                rb(t0, t0)
                E("v_mul_f32 v%d, v%d, v%d" % (t1, t0, t0))
                E("v_fma_f32 v%d, v%d, s12, v%d" % (t1, t1, vk1))
                E("v_mul_f32 v%d, v%d, v%d" % (t1, t1, t0))
                E("v_exp_f32 v%d, v%d" % (t1, t1))
                E("s_nop 0")
                E("v_add_f32 v%d, 1.0, v%d" % (t1, t1))
                E("v_rcp_f32 v%d, v%d" % (t1, t1))
                E("s_nop 0")
                E("v_mul_f32 v%d, v%d, v%d" % (t1, t1, t0))
                rb(t1, t1)
                E("v_fmac_f32 v%d, v%d, v%d" % (YA[c], t1, WF[2]))
    for c in range(3):
        wave_sum(YA[c], YA[c], 84)
    E("s_mul_i32 s8, s3, 12")
    E("v_mov_b32 v%d, s8" % t0)
    E("s_mov_b64 s[14:15], exec")
    E("s_mov_b64 exec, 1")
    for c in range(3):
        E("ds_write_b32 v%d, v%d offset:%d" % (t0, YA[c], YP + 4 * c))
    E("s_mov_b64 exec, s[14:15]")
    for a in range(24):
        E("v_mov_b32 v%d, 0" % (ACC + a))
    n = 0
    for t in range(20):
        vm.wait("t%d" % n)
        gemv_tile(RING + 12 * (n % R), XNV + t, ACC, TMP[0], TMP[1])
        if n + R < len(tiles):
            issue_tile(n + R)
        n += 1
    E("v_mul_u32_u24 v%d, 768, v7" % TMP[2])
    E("v_lshl_add_u32 v%d, v3, 5, v%d" % (TMP[2], TMP[2]))
    def red_write():
        for i in range(3):
            E("ds_write_b128 v%d, v[%d:%d] offset:%d" % (TMP[2], ACC + 8 * i, ACC + 8 * i + 3, RED + 256 * i))
            E("ds_write_b128 v%d, v[%d:%d] offset:%d" % (TMP[2], ACC + 8 * i + 4, ACC + 8 * i + 7, RED + 256 * i + 16))
    red_write()
    E("s_waitcnt lgkmcnt(0)")
    E("s_barrier")
    E("s_cmp_eq_u32 s3, 3")
    E("s_cbranch_scc1 K1_SKIPQ")
    for g in range(32):
        E("ds_read_b32 v%d, v9 offset:%d" % (ACC + (g % 24) if g < 24 else XNV + g - 24, RED + 768 * g))
    E("s_waitcnt lgkmcnt(0)")
    regs = [ACC + g for g in range(24)] + [XNV + g for g in range(8)]
    for g in range(1, 32):
        E("v_add_f32 v%d, v%d, v%d" % (regs[0], regs[0], regs[g]))
    E("v_cvt_pk_bf16_f32 v%d, v%d, v%d" % (regs[0], regs[0], regs[0]))
    E("v_lshlrev_b32 v%d, 1, v0" % TMP[0])
    E("ds_write_b16 v%d, v%d offset:%d" % (TMP[0], regs[0], QB))
    L("K1_SKIPQ")
    E("s_cmp_lg_u32 s3, 0")
    E("s_cbranch_scc1 K1_SKIPB")
    for w in range(4):
        E("ds_read_b32 v%d, v8 offset:%d" % (XNV + w, YP + 12 * w))
    E("s_waitcnt lgkmcnt(0)")
    y = XNV
    for w in range(1, 4):
        E("v_add_f32 v%d, v%d, v%d" % (y, y, XNV + w))
    rb(y, y)
    E("v_lshlrev_b32 v%d, 16, v%d" % (B2R, B2R))
    E("v_add_f32 v%d, v%d, v%d" % (y, y, B2R))
    rb(y, y)
    E("v_mul_f32 v%d, %s, v%d" % (XNV + 1, fh(-LOG2E), y))
    E("v_exp_f32 v%d, v%d" % (XNV + 1, XNV + 1))
    E("s_nop 0")
    E("v_add_f32 v%d, 1.0, v%d" % (XNV + 1, XNV + 1))
    E("v_rcp_f32 v%d, v%d" % (XNV + 1, XNV + 1))
    E("s_nop 0")
    E("v_mul_f32 v%d, v%d, v%d" % (y, y, XNV + 1))
    rb(y, y)
    E("s_cmp_lt_u32 s2, 128")
    E("s_cselect_b32 s8, 7, 3")
    E("s_mov_b32 s9, 0")
    E("s_mov_b64 s[14:15], exec")
    E("s_mov_b64 exec, s[8:9]")
    E("v_lshlrev_b32 v%d, 10, v1" % (XNV + 1))
    E("s_lshl_b32 s8, s2, 2")
    E("s_add_u32 s8, s8, %d" % G_OFF)
    E("v_add_u32 v%d, s8, v%d" % (XNV + 1, XNV + 1))
    E("buffer_store_dword v%d, v%d, s[%d:%d], 0 offen" % (y, XNV + 1, sWS, sWS + 3))
    E("s_mov_b64 exec, s[14:15]")
    L("K1_SKIPB")
    vm.issue("gstore")
    vm.q.pop()
    E("s_waitcnt lgkmcnt(0)")
    E("s_barrier")
    E("v_lshlrev_b32 v%d, 4, v3" % TMP[0])
    for i in range(3):
        E("ds_read_b128 v[%d:%d], v%d offset:%d" % (QF + 4 * i, QF + 4 * i + 3, TMP[0], QB + 128 * i))
    E("s_waitcnt lgkmcnt(0)")
    scale = 192 ** -0.5
    for t in range(16):
        vm.wait("t%d" % n)
        base = RING + 12 * (n % R)
        a = TMP[0]
        E("v_dot2_f32_bf16 v%d, v%d, v%d, 0" % (a, base, QF))
        for k in range(1, 12):
            E("v_dot2_f32_bf16 v%d, v%d, v%d, v%d" % (a, base + k, QF + k, a))
        if n + R < len(tiles):
            issue_tile(n + R)
        else:
            E("s_nop 2")
        E("v_add_f32_dpp v%d, v%d, v%d quad_perm:[1,0,3,2] row_mask:0xf bank_mask:0xf" % (a, a, a))
        E("s_nop 1")
        E("v_add_f32_dpp v%d, v%d, v%d quad_perm:[2,3,0,1] row_mask:0xf bank_mask:0xf" % (a, a, a))
        E("s_nop 1")
        E("v_add_f32_dpp v%d, v%d, v%d row_half_mirror row_mask:0xf bank_mask:0xf" % (a, a, a))
        rb(a, a)
        E("v_mul_f32 v%d, %s, v%d" % (a, fh(scale), a))
        rb(SC + t, a)
        n += 1
    vmx, vl = TMP[4], TMP[5]
    E("v_max_f32 v%d, v%d, v%d" % (vmx, SC, SC + 1))
    for t in range(2, 16):
        E("v_max_f32 v%d, v%d, v%d" % (vmx, vmx, SC + t))
    for t in range(16):
        E("v_sub_f32 v%d, v%d, v%d" % (SC + t, SC + t, vmx))
        E("v_mul_f32 v%d, %s, v%d" % (SC + t, fh(LOG2E), SC + t))
        E("v_exp_f32 v%d, v%d" % (SC + t, SC + t))
    E("s_nop 0")
    E("v_add_f32 v%d, v%d, v%d" % (vl, SC, SC + 1))
    for t in range(2, 16):
        E("v_add_f32 v%d, v%d, v%d" % (vl, vl, SC + t))
    for a in range(24):
        E("v_mov_b32 v%d, 0" % (ACC + a))
    for t in range(16):
        vm.wait("t%d" % n)
        gemv_tile(RING + 12 * (n % R), SC + t, ACC, TMP[0], TMP[1])
        if n + R < len(tiles):
            issue_tile(n + R)
        n += 1
    red_write()
    E("v_lshlrev_b32 v%d, 3, v7" % TMP[0])
    E("ds_write_b64 v%d, v[%d:%d] offset:%d" % (TMP[0], vmx, vl, ML))
    E("s_waitcnt lgkmcnt(0)")
    E("s_barrier")
    E("s_cmp_eq_u32 s3, 3")
    E("s_cbranch_scc1 K1_END")
    MLR = RING
    AR = RING + 64
    E("v_mov_b32 v%d, 0" % TMP[0])
    for g in range(32):
        E("ds_read_b64 v[%d:%d], v%d offset:%d" % (MLR + 2 * g, MLR + 2 * g + 1, TMP[0], ML + 8 * g))
    for g in range(32):
        E("ds_read_b32 v%d, v9 offset:%d" % (AR + g, RED + 768 * g))
    E("s_waitcnt lgkmcnt(0)")
    M = TMP[6]
    E("v_max_f32 v%d, v%d, v%d" % (M, MLR, MLR + 2))
    for g in range(2, 32):
        E("v_max_f32 v%d, v%d, v%d" % (M, M, MLR + 2 * g))
    O, LS = TMP[1], TMP[7]
    E("v_mov_b32 v%d, 0" % O)
    E("v_mov_b32 v%d, 0" % LS)
    for g in range(32):
        E("v_sub_f32 v%d, v%d, v%d" % (MLR + 2 * g, MLR + 2 * g, M))
        E("v_mul_f32 v%d, %s, v%d" % (MLR + 2 * g, fh(LOG2E), MLR + 2 * g))
        E("v_exp_f32 v%d, v%d" % (MLR + 2 * g, MLR + 2 * g))
    E("s_nop 0")
    for g in range(32):
        E("v_fmac_f32 v%d, v%d, v%d" % (O, MLR + 2 * g, AR + g))
        E("v_fmac_f32 v%d, v%d, v%d" % (LS, MLR + 2 * g, MLR + 2 * g + 1))
    E("s_lshl_b32 s8, s4, 3")
    E("s_add_u32 s8, s8, s5")
    E("s_lshl_b32 s8, s8, 10")
    E("v_add_u32 v%d, s8, v9" % TMP[0])
    E("buffer_store_dword v%d, v%d, s[%d:%d], 0 offen" % (O, TMP[0], sWS, sWS + 3))
    E("v_mov_b32 v%d, s8" % TMP[0])
    E("s_mov_b64 exec, 1")
    E("buffer_store_dwordx2 v[%d:%d], v%d, s[%d:%d], 0 offen offset:768" % (M, M + 1, TMP[0], sWS, sWS + 3))
    L("K1_END")
    E("s_endpgm")

def kernel2():
    vm = VM()
    L(NAME + "_k2_kernel")
    E("s_cmp_ge_u32 s2, 320")
    E("s_cbranch_scc1 K2_END")
    E("s_load_dwordx16 s[16:31], s[0:1], 0")
    E("s_load_dwordx8 s[32:39], s[0:1], 64")
    E("s_load_dwordx2 s[40:41], s[0:1], 96")
    E("s_mov_b32 s5, 429496730")
    E("s_mul_hi_u32 s4, s2, s5")
    E("s_mul_i32 s5, s4, 10")
    E("s_sub_u32 s5, s2, s5")
    E("v_lshrrev_b32 v4, 6, v0")
    E("s_nop 0")
    E("v_readfirstlane_b32 s3, v4")
    E("v_lshrrev_b32 v2, 3, v0")
    E("v_and_b32 v3, 7, v0")
    E("v_lshlrev_b32 v9, 2, v0")
    E("s_waitcnt lgkmcnt(0)")
    sX, sWO, sOUT, sDBG, sWS = 44, 48, 52, 56, 60
    srd(sX, 16, 1280)
    srd(sWO, 24, 7864320)
    srd(sOUT, 36, 1280)
    srd(sDBG, 38, 256)
    srd(sWS, 40, WS_BYTES)
    E("s_lshl_b32 s8, s4, 13")
    E("v_add_u32 v5, s8, v9")
    E("v_mov_b32 v6, s8")
    OP = 10
    MLP = 18
    for s in range(8):
        E("buffer_load_dwordx2 v[%d:%d], v6, s[%d:%d], 0 offen offset:%d" % (MLP + 2 * s, MLP + 2 * s + 1, sWS, sWS + 3, 768))
        vm.issue("ml")
        E("buffer_load_dword v%d, v5, s[%d:%d], 0 offen" % (OP + s, sWS, sWS + 3))
        vm.issue("op")
        if s < 7:
            E("v_add_u32 v5, 1024, v5")
            E("v_add_u32 v6, 1024, v6")
    E("s_mul_i32 s8, s4, 192")
    E("v_add_u32 v7, s8, v2")
    E("v_mul_u32_u24 v7, 1280, v7")
    E("v_lshl_add_u32 v7, v3, 4, v7")
    E("s_lshl_b32 s8, s5, 7")
    E("v_add_u32 v7, s8, v7")
    WOR = 40
    for p in range(6):
        E("s_mov_b32 s10, %d" % (p * 40960))
        E("buffer_load_dwordx4 v[%d:%d], v7, s[%d:%d], s10 offen" % (WOR + 4 * p, WOR + 4 * p + 3, sWO, sWO + 3))
        vm.issue("wo%d" % p)
    vm.wait("op")
    M, O, LS, T = 34, 35, 36, 37
    E("v_max_f32 v%d, v%d, v%d" % (M, MLP, MLP + 2))
    for s in range(2, 8):
        E("v_max_f32 v%d, v%d, v%d" % (M, M, MLP + 2 * s))
    E("v_mov_b32 v%d, 0" % O)
    E("v_mov_b32 v%d, 0" % LS)
    for s in range(8):
        E("v_sub_f32 v%d, v%d, v%d" % (MLP + 2 * s, MLP + 2 * s, M))
        E("v_mul_f32 v%d, %s, v%d" % (MLP + 2 * s, fh(LOG2E), MLP + 2 * s))
        E("v_exp_f32 v%d, v%d" % (MLP + 2 * s, MLP + 2 * s))
    E("s_nop 0")
    for s in range(8):
        E("v_fmac_f32 v%d, v%d, v%d" % (O, MLP + 2 * s, OP + s))
        E("v_fmac_f32 v%d, v%d, v%d" % (LS, MLP + 2 * s, MLP + 2 * s + 1))
    E("v_rcp_f32 v%d, v%d" % (T, LS))
    E("s_nop 0")
    E("v_mul_f32 v%d, v%d, v%d" % (M, O, T))
    E("v_fma_f32 v%d, -v%d, v%d, v%d" % (O, M, LS, O))
    E("v_fma_f32 v%d, v%d, v%d, v%d" % (M, O, T, M))
    rb(M, M)
    E("ds_write_b32 v9, v%d" % M)
    E("s_waitcnt lgkmcnt(0)")
    E("s_barrier")
    E("v_lshlrev_b32 v8, 2, v2")
    OV = 10
    for p in range(6):
        E("ds_read_b32 v%d, v8 offset:%d" % (OV + p, 128 * p))
    AC = 20
    for a in range(8):
        E("v_mov_b32 v%d, 0" % (AC + a))
    E("s_waitcnt lgkmcnt(0)")
    for p in range(6):
        vm.wait("wo%d" % p)
        for k in range(4):
            E("v_lshlrev_b32 v%d, 16, v%d" % (T, WOR + 4 * p + k))
            E("v_and_b32 v%d, 0xffff0000, v%d" % (T + 1, WOR + 4 * p + k))
            E("v_fmac_f32 v%d, v%d, v%d" % (AC + 2 * k, OV + p, T))
            E("v_fmac_f32 v%d, v%d, v%d" % (AC + 2 * k + 1, OV + p, T + 1))
    E("v_lshlrev_b32 v8, 8, v2")
    E("v_lshl_add_u32 v8, v3, 5, v8")
    E("ds_write_b128 v8, v[%d:%d] offset:1024" % (AC, AC + 3))
    E("ds_write_b128 v8, v[%d:%d] offset:1040" % (AC + 4, AC + 7))
    E("s_waitcnt lgkmcnt(0)")
    E("s_barrier")
    E("s_cmp_lg_u32 s3, 0")
    E("s_cbranch_scc1 K2_END")
    RR = 64
    for g in range(32):
        E("ds_read_b32 v%d, v9 offset:%d" % (RR + g, 1024 + 256 * g))
    E("s_waitcnt lgkmcnt(0)")
    for g in range(1, 32):
        E("v_add_f32 v%d, v%d, v%d" % (RR, RR, RR + g))
    E("s_lshl_b32 s8, s5, 5")
    E("s_add_u32 s8, s8, s4")
    E("s_lshl_b32 s8, s8, 8")
    E("s_add_u32 s8, s8, %d" % SP_OFF)
    E("v_add_u32 v8, s8, v9")
    E("buffer_store_dword v%d, v8, s[%d:%d], 0 offen sc1" % (RR, sWS, sWS + 3))
    E("s_waitcnt vmcnt(0)")
    E("s_lshl_b32 s8, s5, 2")
    E("v_mov_b32 v8, s8")
    E("v_mov_b32 v10, 1")
    E("s_mov_b64 s[14:15], exec")
    E("s_mov_b64 exec, 1")
    E("buffer_atomic_add v10, v8, s[%d:%d], 0 offen sc0" % (sDBG, sDBG + 3))
    E("s_waitcnt vmcnt(0)")
    E("s_mov_b64 exec, s[14:15]")
    E("v_readfirstlane_b32 s8, v10")
    E("s_cmp_lg_u32 s8, 31")
    E("s_cbranch_scc1 K2_END")
    E("s_lshl_b32 s8, s5, 13")
    E("s_add_u32 s8, s8, %d" % SP_OFF)
    E("v_add_u32 v8, s8, v9")
    for g in range(32):
        if g % 16 == 0 and g:
            E("v_add_u32 v8, 4096, v8")
        E("buffer_load_dword v%d, v8, s[%d:%d], 0 offen offset:%d sc1" % (RR + g, sWS, sWS + 3, 256 * (g % 16)))
    E("s_lshl_b32 s8, s5, 8")
    E("s_add_u32 s9, s8, %d" % G_OFF)
    E("v_add_u32 v10, s9, v9")
    E("buffer_load_dword v11, v10, s[%d:%d], 0 offen" % (sWS, sWS + 3))
    E("s_lshl_b32 s8, s5, 7")
    E("v_lshlrev_b32 v12, 1, v0")
    E("v_add_u32 v12, s8, v12")
    E("buffer_load_ushort v13, v12, s[%d:%d], 0 offen" % (sX, sX + 3))
    E("s_waitcnt vmcnt(0)")
    for g in range(1, 32):
        E("v_add_f32 v%d, v%d, v%d" % (RR, RR, RR + g))
    rb(RR, RR)
    E("v_mul_f32 v%d, v%d, v11" % (RR, RR))
    rb(RR, RR)
    E("v_lshlrev_b32 v13, 16, v13")
    E("v_add_f32 v%d, v%d, v13" % (RR, RR))
    E("v_cvt_pk_bf16_f32 v%d, v%d, v%d" % (RR, RR, RR))
    E("buffer_store_short v%d, v12, s[%d:%d], 0 offen" % (RR, sOUT, sOUT + 3))
    L("K2_END")
    E("s_endpgm")

hdr = open("cdna_kernels/%s.s.ref" % NAME).read().split("\n")
head = [l for l in hdr if l.startswith(";") and "@launch" not in l and "Override launch" not in l and "grid=ceil" not in l]
head = head[:15]
src = "\n".join(head) + "\n"
src += "; @launch kernel=%s_k1_kernel grid=(256,1,1) block=(256,1,1) lds=%d\n" % (NAME, LDS1)
src += "; @launch kernel=%s_k2_kernel grid=(320,1,1) block=(256,1,1) lds=9216\n" % NAME
src += '.amdgcn_target "amdgcn-amd-amdhsa--gfx950"\n.text\n'
for kn, fn in ((NAME + "_k1_kernel", kernel1), (NAME + "_k2_kernel", kernel2)):
    out.clear()
    fn()
    src += ".globl %s\n.p2align 8\n.type %s,@function\n" % (kn, kn) + "\n".join(out) + "\n"
src += '.section .rodata,"a"\n'
for kn, nv in ((NAME + "_k1_kernel", 256), (NAME + "_k2_kernel", 128)):
    src += """.p2align 6
.amdhsa_kernel %s
  .amdhsa_next_free_vgpr %d
  .amdhsa_next_free_sgpr 102
  .amdhsa_accum_offset %d
  .amdhsa_group_segment_fixed_size 0
  .amdhsa_kernarg_size 104
  .amdhsa_user_sgpr_count 2
  .amdhsa_user_sgpr_kernarg_segment_ptr 1
  .amdhsa_system_sgpr_workgroup_id_x 1
.end_amdhsa_kernel
""" % (kn, nv, nv)
open(sys.argv[1] if len(sys.argv) > 1 else "cdna_kernels/%s.s" % NAME, "w").write(src)
```

```python
import struct, sys
NAME = "recurrent_scan__sliding_block_cached__mixer_token_mlp__decode"
R = 15

def f2u(x):
    return struct.unpack("<I", struct.pack("<f", x))[0]
def fh(x):
    return "0x%08x" % f2u(x)

LOG2E = 1.4426950408889634
out = []
def E(s):
    out.append("    " + s)
def L(s):
    out.append(s + ":")

class VM:
    def __init__(self):
        self.q = []
    def issue(self, tag):
        self.q.append(tag)
    def wait(self, tag):
        if tag not in self.q:
            return
        i = len(self.q) - 1 - self.q[::-1].index(tag)
        n = len(self.q) - 1 - i
        assert n <= 63
        E("s_waitcnt vmcnt(%d)" % n)
        self.q = self.q[i + 1:]
    def drain(self):
        E("s_waitcnt vmcnt(0)")
        self.q = []

def srd(d, p, nbytes):
    E("s_mov_b32 s%d, s%d" % (d, p))
    E("s_and_b32 s%d, s%d, 0xffff" % (d + 1, p + 1))
    E("s_mov_b32 s%d, 0x%x" % (d + 2, nbytes))
    E("s_mov_b32 s%d, 0x00020000" % (d + 3))

def rb(vd, vs):
    E("v_cvt_pk_bf16_f32 v%d, v%d, v%d" % (vd, vs, vs))
    E("v_lshlrev_b32 v%d, 16, v%d" % (vd, vd))

def wave_sum(vin, vt, sa):
    E("s_nop 1")
    E("v_add_f32_dpp v%d, v%d, v%d quad_perm:[1,0,3,2] row_mask:0xf bank_mask:0xf" % (vt, vin, vin))
    E("s_nop 1")
    E("v_add_f32_dpp v%d, v%d, v%d quad_perm:[2,3,0,1] row_mask:0xf bank_mask:0xf" % (vt, vt, vt))
    E("s_nop 1")
    E("v_add_f32_dpp v%d, v%d, v%d row_half_mirror row_mask:0xf bank_mask:0xf" % (vt, vt, vt))
    E("s_nop 1")
    E("v_add_f32_dpp v%d, v%d, v%d row_mirror row_mask:0xf bank_mask:0xf" % (vt, vt, vt))
    E("s_nop 1")
    for i in range(4):
        E("v_readlane_b32 s%d, v%d, %d" % (sa + i, vt, 16 * i))
    E("s_nop 1")
    E("v_mov_b32 v%d, s%d" % (vt, sa))
    for i in range(1, 4):
        E("v_add_f32 v%d, s%d, v%d" % (vt, sa + i, vt))

WS_BYTES = 1610612736
PART_OFF = 0
G_OFF = 262144
SP_OFF = 262144 + 4096

XN = 0
HH = 10240
RED = 20480
QB = 45056
ML = 45440
YP = 45696
LDS1 = 46080

def layernorm(xs, tmp, sa, outregs):
    t0, t1, t2, t3, t4, t5 = tmp[:6]
    E("v_add_f32 v%d, v%d, v%d" % (t0, xs[0], xs[1]))
    for i in range(2, 10):
        E("v_add_f32 v%d, v%d, v%d" % (t0, t0, xs[i]))
    wave_sum(t0, t1, sa)
    E("v_mul_f32 v%d, %s, v%d" % (t1, fh(1.0 / 640), t1))
    E("v_sub_f32 v%d, v%d, v%d" % (t2, xs[0], t1))
    E("v_mul_f32 v%d, v%d, v%d" % (t0, t2, t2))
    for i in range(1, 10):
        E("v_sub_f32 v%d, v%d, v%d" % (t2, xs[i], t1))
        E("v_fmac_f32 v%d, v%d, v%d" % (t0, t2, t2))
    wave_sum(t0, t2, sa)
    E("v_mul_f32 v%d, %s, v%d" % (t2, fh(1.0 / 640), t2))
    rb(t1, t1)
    rb(t2, t2)
    E("v_add_f32 v%d, %s, v%d" % (t2, fh(1e-5), t2))
    rb(t2, t2)
    E("v_sqrt_f32 v%d, v%d" % (t2, t2))
    E("s_nop 0")
    rb(t2, t2)
    E("v_rcp_f32 v%d, v%d" % (t3, t2))
    E("s_nop 0")
    for i in range(10):
        E("v_sub_f32 v%d, v%d, v%d" % (t4, xs[i], t1))
        rb(t4, t4)
        E("v_mul_f32 v%d, v%d, v%d" % (t5, t4, t3))
        E("v_fma_f32 v%d, -v%d, v%d, v%d" % (t4, t5, t2, t4))
        E("v_fma_f32 v%d, v%d, v%d, v%d" % (t5, t4, t3, t5))
        rb(outregs[i], t5)

def gemv_tile(base, vp, acc, t0, t1):
    for k in range(12):
        a = acc + (k // 4) * 8 + (k % 4) * 2
        E("v_lshlrev_b32 v%d, 16, v%d" % (t0, base + k))
        E("v_and_b32 v%d, 0xffff0000, v%d" % (t1, base + k))
        E("v_fmac_f32 v%d, v%d, v%d" % (a, vp, t0))
        E("v_fmac_f32 v%d, v%d, v%d" % (a + 1, vp, t1))

import os
STAMP = os.environ.get("STAMP")
stamp_i = [0]
def stamp():
    if not STAMP: return
    i = stamp_i[0]; stamp_i[0] += 1
    E("s_memrealtime s[%d:%d]" % (86 + 2 * i, 87 + 2 * i))
def stamp_flush():
    if not STAMP: return
    n = stamp_i[0]
    E("s_waitcnt lgkmcnt(0)")
    E("s_mov_b32 s80, s38"); E("s_and_b32 s81, s39, 0xffff"); E("s_mov_b32 s82, 256"); E("s_mov_b32 s83, 0x00020000")
    E("s_cmp_lg_u32 s3, 0"); E("s_cbranch_scc1 K1_NOST")
    E("s_and_b32 s8, s2, 31"); E("s_cmp_lg_u32 s8, 0"); E("s_cbranch_scc1 K1_NOST")
    E("s_lshr_b32 s8, s2, 5"); E("s_lshl_b32 s8, s8, 5")
    E("s_mov_b64 exec, 1")
    for i in range(n):
        E("v_mov_b32 v1, s%d" % (86 + 2 * i))
        E("v_mov_b32 v2, s8")
        E("buffer_store_dword v1, v2, s[80:83], 0 offen offset:%d" % (4 * i))
    L("K1_NOST")

def wave_max(vin, vt, sa):
    E("s_nop 1")
    E("v_max_f32_dpp v%d, v%d, v%d quad_perm:[1,0,3,2] row_mask:0xf bank_mask:0xf" % (vt, vin, vin))
    E("s_nop 1")
    E("v_max_f32_dpp v%d, v%d, v%d quad_perm:[2,3,0,1] row_mask:0xf bank_mask:0xf" % (vt, vt, vt))
    E("s_nop 1")
    E("v_max_f32_dpp v%d, v%d, v%d row_half_mirror row_mask:0xf bank_mask:0xf" % (vt, vt, vt))
    E("s_nop 1")
    E("v_max_f32_dpp v%d, v%d, v%d row_mirror row_mask:0xf bank_mask:0xf" % (vt, vt, vt))
    E("s_nop 1")
    for i in range(4):
        E("v_readlane_b32 s%d, v%d, %d" % (sa + i, vt, 16 * i))
    E("s_nop 1")
    E("v_mov_b32 v%d, s%d" % (vt, sa))
    for i in range(1, 4):
        E("v_max_f32 v%d, s%d, v%d" % (vt, sa + i, vt))

NW = 8
NG = NW * 8
NWQ = 640 // NG
NKV = 512 // NG
RED = 0
QB = RED + NG * 768
ML = QB + 384
YP = ML + NG * 8
XN = YP + 512
HHB = XN + NW * 2560
HH = 0
LDS1 = HHB + NW * 2560

def kernel1():
    vm = VM()
    L(NAME + "_k1_kernel")
    E("s_cmp_ge_u32 s2, 256")
    E("s_cbranch_scc1 K1_END")
    E("s_load_dwordx16 s[16:31], s[0:1], 0")
    E("s_load_dwordx8 s[32:39], s[0:1], 64")
    E("s_load_dwordx2 s[40:41], s[0:1], 96")
    E("v_and_b32 v1, 63, v0")
    E("v_lshrrev_b32 v2, 3, v1")
    E("v_and_b32 v3, 7, v1")
    E("v_lshrrev_b32 v4, 6, v0")
    E("s_nop 0")
    E("v_readfirstlane_b32 s3, v4")
    E("s_and_b32 s4, s2, 7")
    E("s_lshr_b32 s5, s2, 3")
    E("s_and_b32 s6, s5, 3")
    E("s_lshl_b32 s4, s4, 2")
    E("s_add_u32 s4, s4, s6")
    E("s_lshr_b32 s5, s5, 2")
    E("s_waitcnt lgkmcnt(0)")
    stamp()
    sX, sK, sV, sWQ, sW1, sB1, sW2, sB2, sWS = 44, 48, 52, 56, 60, 64, 68, 72, 76
    srd(sX, 16, 1280)
    srd(sK, 18, 402653184)
    srd(sV, 20, 402653184)
    srd(sWQ, 22, 7864320)
    srd(sW1, 28, 3072)
    srd(sB1, 30, 3072)
    srd(sW2, 32, 3072)
    srd(sB2, 34, 2)
    srd(sWS, 40, WS_BYTES)
    E("s_mul_i32 s7, s4, 12582912")
    E("s_lshl_b32 s8, s5, 9")
    E("s_mul_i32 s9, s3, %d" % (NKV * 8))
    E("s_add_u32 s8, s8, s9")
    E("s_add_u32 s8, s8, 28672")
    E("s_mul_i32 s8, s8, 384")
    E("s_add_u32 s7, s7, s8")
    E("v_mul_u32_u24 v5, 384, v2")
    E("v_lshl_add_u32 v5, v3, 4, v5")
    E("v_add_u32 v5, s7, v5")
    E("s_lshl_b32 s8, s3, 3")
    E("v_add_u32 v6, s8, v2")
    E("v_mov_b32 v7, v6")
    E("v_mul_u32_u24 v6, 12288, v6")
    E("v_lshl_add_u32 v6, v3, 4, v6")
    E("s_mul_i32 s8, s4, 384")
    E("v_add_u32 v6, s8, v6")
    E("v_lshlrev_b32 v8, 2, v1")
    E("v_lshlrev_b32 v9, 2, v0")
    ACC = 10
    QF = 34
    SC = 46
    XNV = 54
    TMP = list(range(64, 74))
    B2R = 74
    RING = 76
    XR = 10
    W1R, B1R, W2R = 15, 18, 21
    XS = list(range(24, 34))
    HS = list(range(34, 44))
    for i in range(5):
        E("buffer_load_dword v%d, v8, s[%d:%d], 0 offen offset:%d" % (XR + i, sX, sX + 3, 256 * i))
        vm.issue("x%d" % i)
    E("v_and_b32 v%d, 0x3ff, v9" % TMP[0])
    for i in range(3):
        E("buffer_load_dword v%d, v%d, s[%d:%d], 0 offen offset:%d" % (W1R + i, TMP[0], sW1, sW1 + 3, 1024 * i)); vm.issue("w1")
        E("buffer_load_dword v%d, v%d, s[%d:%d], 0 offen offset:%d" % (B1R + i, TMP[0], sB1, sB1 + 3, 1024 * i)); vm.issue("b1")
        E("buffer_load_dword v%d, v%d, s[%d:%d], 0 offen offset:%d" % (W2R + i, TMP[0], sW2, sW2 + 3, 1024 * i)); vm.issue("w2")
    E("v_mov_b32 v%d, 0" % TMP[1])
    E("buffer_load_ushort v%d, v%d, s[%d:%d], 0 offen" % (B2R, TMP[1], sB2, sB2 + 3)); vm.issue("b2")
    assert RING + 12 * R <= 256
    wq = [("wq", t) for t in range(NWQ)]
    kv = [("k", t) for t in range(NKV)] + [("v", t) for t in range(NKV)]
    order = []
    a, b = list(wq), list(kv)
    om = os.environ.get("ORDER", "inter")
    while a or b:
        for _ in range({"inter": 1, "first": 99, "two": 2}[om]):
            if a: order.append(a.pop(0))
        if b: order.append(b.pop(0))
    free = list(range(R))
    slot = {}
    pending = list(order)
    def issue_next():
        if not pending or not free:
            return False
        tile = pending.pop(0)
        kind, t = tile
        sl = free.pop(0)
        slot[tile] = sl
        base = RING + 12 * sl
        if kind == "wq":
            E("s_mov_b32 s10, %d" % (t * NG * 12288))
            vo, sr, fl = 6, sWQ, (" nt" if os.environ.get("WQNT") else "")
        else:
            E("s_mov_b32 s10, %d" % (t * 3072))
            vo, sr, fl = 5, (sK if kind == "k" else sV), " nt"
        for i in range(3):
            E("buffer_load_dwordx4 v[%d:%d], v%d, s[%d:%d], s10 offen offset:%d%s" % (base + 4 * i, base + 4 * i + 3, vo, sr, sr + 3, 128 * i, fl))
            vm.issue(tile)
        return True
    def release(tile):
        free.append(slot[tile])
    while issue_next():
        pass
    vm.wait("x4")
    for i in range(5):
        E("v_lshlrev_b32 v%d, 16, v%d" % (XS[2 * i], XR + i))
        E("v_and_b32 v%d, 0xffff0000, v%d" % (XS[2 * i + 1], XR + i))
    layernorm(XS, TMP, 80, XS)
    layernorm(XS, TMP, 80, HS)
    E("s_mul_i32 s8, s3, 2560")
    E("v_lshl_add_u32 v%d, v1, 3, s8" % TMP[0])
    for i in range(5):
        E("ds_write_b64 v%d, v[%d:%d] offset:%d" % (TMP[0], XS[2 * i], XS[2 * i + 1], XN + 512 * i))
    E("v_add_u32 v%d, %d, v%d" % (TMP[1], HHB, TMP[0]))
    for i in range(5):
        E("ds_write_b64 v%d, v[%d:%d] offset:%d" % (TMP[1], HS[2 * i], HS[2 * i + 1], HH + 512 * i))
    E("s_waitcnt lgkmcnt(0)")
    E("v_lshl_add_u32 v%d, v7, 2, s8" % TMP[0])
    for t in range(NWQ):
        E("ds_read_b32 v%d, v%d offset:%d" % (XNV + t, TMP[0], XN + NG * 4 * t))
    stamp()
    E("s_cmp_ge_u32 s3, 4")
    E("s_cbranch_scc1 K1_NOB")
    E("s_lshl_b32 s9, s2, 2")
    E("s_add_u32 s9, s9, s8")
    E("s_add_u32 s9, s9, %d" % HHB)
    E("v_mov_b32 v%d, s9" % TMP[1])
    HD = HS[0:3]
    E("ds_read_b32 v%d, v%d offset:%d" % (HD[0], TMP[1], HH))
    E("ds_read_b32 v%d, v%d offset:%d" % (HD[1], TMP[1], HH + 1024))
    E("s_cmp_lt_u32 s2, 128")
    E("s_cselect_b32 s11, 2048, 0")
    E("v_add_u32 v%d, s11, v%d" % (TMP[1], TMP[1]))
    E("ds_read_b32 v%d, v%d offset:%d" % (HD[2], TMP[1], HH))
    vm.wait("b2")
    K1c = -2.0 * LOG2E * 0.7978845608028654
    K2c = K1c * 0.044715
    YA = HS[3:6]
    WF = HS[6:9]
    vk1 = HS[9]
    E("v_mov_b32 v%d, %s" % (vk1, fh(K1c)))
    E("s_mov_b32 s12, %s" % fh(K2c))
    for c in range(3):
        E("v_mov_b32 v%d, 0" % YA[c])
    E("s_waitcnt lgkmcnt(0)")
    t0, t1, t2 = TMP[0:3]
    for i in range(3):
        for half in range(2):
            for (dst, src) in ((WF[0], W1R + i), (WF[1], B1R + i), (WF[2], W2R + i)):
                if half == 0:
                    E("v_lshlrev_b32 v%d, 16, v%d" % (dst, src))
                else:
                    E("v_and_b32 v%d, 0xffff0000, v%d" % (dst, src))
            for c in range(3):
                E("v_mul_f32 v%d, v%d, v%d" % (t0, HD[c], WF[0]))
                rb(t0, t0)
                E("v_add_f32 v%d, v%d, v%d" % (t0, t0, WF[1]))
                rb(t0, t0)
                E("v_mul_f32 v%d, v%d, v%d" % (t1, t0, t0))
                E("v_fma_f32 v%d, v%d, s12, v%d" % (t1, t1, vk1))
                E("v_mul_f32 v%d, v%d, v%d" % (t1, t1, t0))
                E("v_exp_f32 v%d, v%d" % (t1, t1))
                E("s_nop 0")
                E("v_add_f32 v%d, 1.0, v%d" % (t1, t1))
                E("v_rcp_f32 v%d, v%d" % (t1, t1))
                E("s_nop 0")
                E("v_mul_f32 v%d, v%d, v%d" % (t1, t1, t0))
                rb(t1, t1)
                E("v_fmac_f32 v%d, v%d, v%d" % (YA[c], t1, WF[2]))
    for c in range(3):
        wave_sum(YA[c], YA[c], 80)
    E("s_mul_i32 s8, s3, 12")
    E("v_mov_b32 v%d, s8" % t0)
    E("s_mov_b64 s[14:15], exec")
    E("s_mov_b64 exec, 1")
    for c in range(3):
        E("ds_write_b32 v%d, v%d offset:%d" % (t0, YA[c], YP + 4 * c))
    E("s_mov_b64 exec, s[14:15]")
    L("K1_NOB")
    E("s_waitcnt lgkmcnt(0)")
    stamp()
    for a in range(24):
        E("v_mov_b32 v%d, 0" % (ACC + a))
    for t in range(NWQ):
        tile = ("wq", t)
        vm.wait(tile)
        gemv_tile(RING + 12 * slot[tile], XNV + t, ACC, TMP[0], TMP[1])
        release(tile)
        issue_next()
    stamp()
    E("v_mul_u32_u24 v%d, 768, v7" % TMP[2])
    E("v_lshl_add_u32 v%d, v3, 5, v%d" % (TMP[2], TMP[2]))
    def red_write():
        for i in range(3):
            E("ds_write_b128 v%d, v[%d:%d] offset:%d" % (TMP[2], ACC + 8 * i, ACC + 8 * i + 3, RED + 256 * i))
            E("ds_write_b128 v%d, v[%d:%d] offset:%d" % (TMP[2], ACC + 8 * i + 4, ACC + 8 * i + 7, RED + 256 * i + 16))
    red_write()
    E("s_waitcnt lgkmcnt(0)")
    E("s_barrier")
    E("s_cmp_ge_u32 s3, 3")
    E("s_cbranch_scc1 K1_SKIPQ")
    regs = [ACC + g for g in range(24)] + [SC + g for g in range(8)]
    acc = TMP[0]
    for bt in range(NG // 32):
        for g in range(32):
            E("ds_read_b32 v%d, v9 offset:%d" % (regs[g], RED + 768 * (bt * 32 + g)))
        for g in range(32):
            E("s_waitcnt lgkmcnt(%d)" % min(15, 31 - g))
            if bt == 0 and g == 0:
                E("v_mov_b32 v%d, v%d" % (acc, regs[0]))
            else:
                E("v_add_f32 v%d, v%d, v%d" % (acc, acc, regs[g]))
    E("v_cvt_pk_bf16_f32 v%d, v%d, v%d" % (acc, acc, acc))
    E("v_lshlrev_b32 v%d, 1, v0" % TMP[1])
    E("ds_write_b16 v%d, v%d offset:%d" % (TMP[1], acc, QB))
    E("s_branch K1_SKIPB")
    L("K1_SKIPQ")
    E("s_cmp_lg_u32 s3, 3")
    E("s_cbranch_scc1 K1_SKIPB")
    Y = ACC
    for w in range(4):
        E("ds_read_b32 v%d, v8 offset:%d" % (Y + w, YP + 12 * w))
    E("s_waitcnt lgkmcnt(0)")
    y = Y
    for w in range(1, 4):
        E("v_add_f32 v%d, v%d, v%d" % (y, y, Y + w))
    rb(y, y)
    E("v_lshlrev_b32 v%d, 16, v%d" % (B2R, B2R))
    E("v_add_f32 v%d, v%d, v%d" % (y, y, B2R))
    rb(y, y)
    E("v_mul_f32 v%d, %s, v%d" % (Y + 1, fh(-LOG2E), y))
    E("v_exp_f32 v%d, v%d" % (Y + 1, Y + 1))
    E("s_nop 0")
    E("v_add_f32 v%d, 1.0, v%d" % (Y + 1, Y + 1))
    E("v_rcp_f32 v%d, v%d" % (Y + 1, Y + 1))
    E("s_nop 0")
    E("v_mul_f32 v%d, v%d, v%d" % (y, y, Y + 1))
    rb(y, y)
    E("s_cmp_lt_u32 s2, 128")
    E("s_cselect_b32 s8, 7, 3")
    E("s_mov_b32 s9, 0")
    E("s_mov_b64 s[14:15], exec")
    E("s_mov_b64 exec, s[8:9]")
    E("v_lshlrev_b32 v%d, 10, v1" % (Y + 1))
    E("s_lshl_b32 s8, s2, 2")
    E("s_add_u32 s8, s8, %d" % G_OFF)
    E("v_add_u32 v%d, s8, v%d" % (Y + 1, Y + 1))
    E("buffer_store_dword v%d, v%d, s[%d:%d], 0 offen" % (y, Y + 1, sWS, sWS + 3))
    E("s_mov_b64 exec, s[14:15]")
    L("K1_SKIPB")
    E("s_waitcnt lgkmcnt(0)")
    E("s_barrier")
    E("v_lshlrev_b32 v%d, 4, v3" % TMP[0])
    for i in range(3):
        E("ds_read_b128 v[%d:%d], v%d offset:%d" % (QF + 4 * i, QF + 4 * i + 3, TMP[0], QB + 128 * i))
    E("s_waitcnt lgkmcnt(0)")
    stamp()
    scale = 192 ** -0.5
    for t in range(NKV):
        tile = ("k", t)
        vm.wait(tile)
        base = RING + 12 * slot[tile]
        a = TMP[0]
        E("v_dot2_f32_bf16 v%d, v%d, v%d, 0" % (a, base, QF))
        for k in range(1, 12):
            E("v_dot2_f32_bf16 v%d, v%d, v%d, v%d" % (a, base + k, QF + k, a))
        release(tile)
        if not issue_next():
            E("s_nop 2")
        E("v_add_f32_dpp v%d, v%d, v%d quad_perm:[1,0,3,2] row_mask:0xf bank_mask:0xf" % (a, a, a))
        E("s_nop 1")
        E("v_add_f32_dpp v%d, v%d, v%d quad_perm:[2,3,0,1] row_mask:0xf bank_mask:0xf" % (a, a, a))
        E("s_nop 1")
        E("v_add_f32_dpp v%d, v%d, v%d row_half_mirror row_mask:0xf bank_mask:0xf" % (a, a, a))
        rb(a, a)
        E("v_mul_f32 v%d, %s, v%d" % (a, fh(scale), a))
        rb(SC + t, a)
    stamp()
    vmx, vl = TMP[4], TMP[5]
    E("v_max_f32 v%d, v%d, v%d" % (vmx, SC, SC + 1))
    for t in range(2, NKV):
        E("v_max_f32 v%d, v%d, v%d" % (vmx, vmx, SC + t))
    for t in range(NKV):
        E("v_sub_f32 v%d, v%d, v%d" % (SC + t, SC + t, vmx))
        E("v_mul_f32 v%d, %s, v%d" % (SC + t, fh(LOG2E), SC + t))
        E("v_exp_f32 v%d, v%d" % (SC + t, SC + t))
    E("s_nop 0")
    E("v_add_f32 v%d, v%d, v%d" % (vl, SC, SC + 1))
    for t in range(2, NKV):
        E("v_add_f32 v%d, v%d, v%d" % (vl, vl, SC + t))
    for a in range(24):
        E("v_mov_b32 v%d, 0" % (ACC + a))
    for t in range(NKV):
        tile = ("v", t)
        vm.wait(tile)
        gemv_tile(RING + 12 * slot[tile], SC + t, ACC, TMP[0], TMP[1])
        release(tile)
        issue_next()
    stamp()
    red_write()
    E("v_lshlrev_b32 v%d, 3, v7" % TMP[0])
    E("ds_write_b64 v%d, v[%d:%d] offset:%d" % (TMP[0], vmx, vl, ML))
    E("s_waitcnt lgkmcnt(0)")
    E("s_barrier")
    E("s_cmp_ge_u32 s3, 3")
    E("s_cbranch_scc1 K1_END")
    AR = RING
    MLV = TMP[4]
    E("v_lshlrev_b32 v%d, 3, v1" % TMP[0])
    E("ds_read_b64 v[%d:%d], v%d offset:%d" % (MLV, MLV + 1, TMP[0], ML))
    for g in range(NG):
        E("ds_read_b32 v%d, v9 offset:%d" % (AR + g, RED + 768 * g))
    E("s_waitcnt lgkmcnt(15)")
    M, LS = TMP[6], TMP[7]
    wave_max(MLV, M, 80)
    E("v_sub_f32 v%d, v%d, v%d" % (MLV, MLV, M))
    E("v_mul_f32 v%d, %s, v%d" % (MLV, fh(LOG2E), MLV))
    E("v_exp_f32 v%d, v%d" % (MLV, MLV))
    E("s_nop 0")
    E("v_mul_f32 v%d, v%d, v%d" % (MLV + 1, MLV, MLV + 1))
    wave_sum(MLV + 1, LS, 80)
    O = TMP[1]
    E("v_mov_b32 v%d, 0" % O)
    E("s_waitcnt lgkmcnt(0)")
    for g0 in range(0, NG, 4):
        for i in range(4):
            E("v_readlane_b32 s%d, v%d, %d" % (80 + i, MLV, g0 + i))
        E("s_nop 0")
        for i in range(4):
            E("v_fmac_f32 v%d, s%d, v%d" % (O, 80 + i, AR + g0 + i))
    E("s_lshl_b32 s8, s4, 3")
    E("s_add_u32 s8, s8, s5")
    E("s_lshl_b32 s8, s8, 10")
    E("v_add_u32 v%d, s8, v9" % TMP[0])
    E("buffer_store_dword v%d, v%d, s[%d:%d], 0 offen" % (O, TMP[0], sWS, sWS + 3))
    E("v_mov_b32 v%d, s8" % TMP[0])
    E("s_mov_b64 exec, 1")
    E("buffer_store_dwordx2 v[%d:%d], v%d, s[%d:%d], 0 offen offset:768" % (M, M + 1, TMP[0], sWS, sWS + 3))
    stamp()
    stamp_flush()
    L("K1_END")
    E("s_endpgm")

def kernel2():
    vm = VM()
    L(NAME + "_k2_kernel")
    E("s_cmp_ge_u32 s2, 320")
    E("s_cbranch_scc1 K2_END")
    E("s_load_dwordx16 s[16:31], s[0:1], 0")
    E("s_load_dwordx8 s[32:39], s[0:1], 64")
    E("s_load_dwordx2 s[40:41], s[0:1], 96")
    E("s_mov_b32 s5, 429496730")
    E("s_mul_hi_u32 s4, s2, s5")
    E("s_mul_i32 s5, s4, 10")
    E("s_sub_u32 s5, s2, s5")
    E("v_lshrrev_b32 v4, 6, v0")
    E("s_nop 0")
    E("v_readfirstlane_b32 s3, v4")
    E("v_lshrrev_b32 v2, 3, v0")
    E("v_and_b32 v3, 7, v0")
    E("v_lshlrev_b32 v9, 2, v0")
    E("s_waitcnt lgkmcnt(0)")
    sX, sWO, sOUT, sDBG, sWS = 44, 48, 52, 56, 60
    srd(sX, 16, 1280)
    srd(sWO, 24, 7864320)
    srd(sOUT, 36, 1280)
    srd(sDBG, 38, 256)
    srd(sWS, 40, WS_BYTES)
    E("s_lshl_b32 s8, s4, 13")
    E("v_add_u32 v5, s8, v9")
    E("v_mov_b32 v6, s8")
    OP = 10
    MLP = 18
    for s in range(8):
        E("buffer_load_dwordx2 v[%d:%d], v6, s[%d:%d], 0 offen offset:%d" % (MLP + 2 * s, MLP + 2 * s + 1, sWS, sWS + 3, 768))
        vm.issue("ml")
        E("buffer_load_dword v%d, v5, s[%d:%d], 0 offen" % (OP + s, sWS, sWS + 3))
        vm.issue("op")
        if s < 7:
            E("v_add_u32 v5, 1024, v5")
            E("v_add_u32 v6, 1024, v6")
    E("s_mul_i32 s8, s4, 192")
    E("v_add_u32 v7, s8, v2")
    E("v_mul_u32_u24 v7, 1280, v7")
    E("v_lshl_add_u32 v7, v3, 4, v7")
    E("s_lshl_b32 s8, s5, 7")
    E("v_add_u32 v7, s8, v7")
    WOR = 40
    for p in range(6):
        E("s_mov_b32 s10, %d" % (p * 40960))
        E("buffer_load_dwordx4 v[%d:%d], v7, s[%d:%d], s10 offen nt" % (WOR + 4 * p, WOR + 4 * p + 3, sWO, sWO + 3))
        vm.issue("wo%d" % p)
    vm.wait("op")
    M, O, LS, T = 34, 35, 36, 37
    E("v_max_f32 v%d, v%d, v%d" % (M, MLP, MLP + 2))
    for s in range(2, 8):
        E("v_max_f32 v%d, v%d, v%d" % (M, M, MLP + 2 * s))
    E("v_mov_b32 v%d, 0" % O)
    E("v_mov_b32 v%d, 0" % LS)
    for s in range(8):
        E("v_sub_f32 v%d, v%d, v%d" % (MLP + 2 * s, MLP + 2 * s, M))
        E("v_mul_f32 v%d, %s, v%d" % (MLP + 2 * s, fh(LOG2E), MLP + 2 * s))
        E("v_exp_f32 v%d, v%d" % (MLP + 2 * s, MLP + 2 * s))
    E("s_nop 0")
    for s in range(8):
        E("v_fmac_f32 v%d, v%d, v%d" % (O, MLP + 2 * s, OP + s))
        E("v_fmac_f32 v%d, v%d, v%d" % (LS, MLP + 2 * s, MLP + 2 * s + 1))
    E("v_rcp_f32 v%d, v%d" % (T, LS))
    E("s_nop 0")
    E("v_mul_f32 v%d, v%d, v%d" % (M, O, T))
    E("v_fma_f32 v%d, -v%d, v%d, v%d" % (O, M, LS, O))
    E("v_fma_f32 v%d, v%d, v%d, v%d" % (M, O, T, M))
    rb(M, M)
    E("ds_write_b32 v9, v%d" % M)
    E("s_waitcnt lgkmcnt(0)")
    E("s_barrier")
    E("v_lshlrev_b32 v8, 2, v2")
    OV = 10
    for p in range(6):
        E("ds_read_b32 v%d, v8 offset:%d" % (OV + p, 128 * p))
    AC = 20
    for a in range(8):
        E("v_mov_b32 v%d, 0" % (AC + a))
    E("s_waitcnt lgkmcnt(0)")
    for p in range(6):
        vm.wait("wo%d" % p)
        for k in range(4):
            E("v_lshlrev_b32 v%d, 16, v%d" % (T, WOR + 4 * p + k))
            E("v_and_b32 v%d, 0xffff0000, v%d" % (T + 1, WOR + 4 * p + k))
            E("v_fmac_f32 v%d, v%d, v%d" % (AC + 2 * k, OV + p, T))
            E("v_fmac_f32 v%d, v%d, v%d" % (AC + 2 * k + 1, OV + p, T + 1))
    E("v_lshlrev_b32 v8, 8, v2")
    E("v_lshl_add_u32 v8, v3, 5, v8")
    E("ds_write_b128 v8, v[%d:%d] offset:1024" % (AC, AC + 3))
    E("ds_write_b128 v8, v[%d:%d] offset:1040" % (AC + 4, AC + 7))
    E("s_waitcnt lgkmcnt(0)")
    E("s_barrier")
    E("s_cmp_lg_u32 s3, 0")
    E("s_cbranch_scc1 K2_END")
    RR = 64
    for g in range(32):
        E("ds_read_b32 v%d, v9 offset:%d" % (RR + g, 1024 + 256 * g))
    E("s_waitcnt lgkmcnt(0)")
    for g in range(1, 32):
        E("v_add_f32 v%d, v%d, v%d" % (RR, RR, RR + g))
    E("s_lshl_b32 s8, s5, 5")
    E("s_add_u32 s8, s8, s4")
    E("s_lshl_b32 s8, s8, 8")
    E("s_add_u32 s8, s8, %d" % SP_OFF)
    E("v_add_u32 v8, s8, v9")
    E("buffer_store_dword v%d, v8, s[%d:%d], 0 offen sc1" % (RR, sWS, sWS + 3))
    E("s_waitcnt vmcnt(0)")
    E("s_lshl_b32 s8, s5, 2")
    E("v_mov_b32 v8, s8")
    E("v_mov_b32 v10, 1")
    E("s_mov_b64 s[14:15], exec")
    E("s_mov_b64 exec, 1")
    E("buffer_atomic_add v10, v8, s[%d:%d], 0 offen sc0" % (sDBG, sDBG + 3))
    E("s_waitcnt vmcnt(0)")
    E("s_mov_b64 exec, s[14:15]")
    E("v_readfirstlane_b32 s8, v10")
    E("s_cmp_lg_u32 s8, 31")
    E("s_cbranch_scc1 K2_END")
    E("s_lshl_b32 s8, s5, 13")
    E("s_add_u32 s8, s8, %d" % SP_OFF)
    E("v_add_u32 v8, s8, v9")
    for g in range(32):
        if g % 16 == 0 and g:
            E("v_add_u32 v8, 4096, v8")
        E("buffer_load_dword v%d, v8, s[%d:%d], 0 offen offset:%d sc1" % (RR + g, sWS, sWS + 3, 256 * (g % 16)))
    E("s_lshl_b32 s8, s5, 8")
    E("s_add_u32 s9, s8, %d" % G_OFF)
    E("v_add_u32 v10, s9, v9")
    E("buffer_load_dword v11, v10, s[%d:%d], 0 offen" % (sWS, sWS + 3))
    E("s_lshl_b32 s8, s5, 7")
    E("v_lshlrev_b32 v12, 1, v0")
    E("v_add_u32 v12, s8, v12")
    E("buffer_load_ushort v13, v12, s[%d:%d], 0 offen" % (sX, sX + 3))
    E("s_waitcnt vmcnt(0)")
    for g in range(1, 32):
        E("v_add_f32 v%d, v%d, v%d" % (RR, RR, RR + g))
    rb(RR, RR)
    E("v_mul_f32 v%d, v%d, v11" % (RR, RR))
    rb(RR, RR)
    E("v_lshlrev_b32 v13, 16, v13")
    E("v_add_f32 v%d, v%d, v13" % (RR, RR))
    E("v_cvt_pk_bf16_f32 v%d, v%d, v%d" % (RR, RR, RR))
    E("buffer_store_short v%d, v12, s[%d:%d], 0 offen" % (RR, sOUT, sOUT + 3))
    L("K2_END")
    E("s_endpgm")

hdr = open("cdna_kernels/%s.s.ref" % NAME).read().split("\n")
head = [l for l in hdr if l.startswith(";") and "@launch" not in l and "Override launch" not in l and "grid=ceil" not in l]
head = head[:15]
src = "\n".join(head) + "\n"
src += "; @launch kernel=%s_k1_kernel grid=(256,1,1) block=(512,1,1) lds=%d\n" % (NAME, LDS1)
src += "; @launch kernel=%s_k2_kernel grid=(320,1,1) block=(256,1,1) lds=9216\n" % NAME
src += '.amdgcn_target "amdgcn-amd-amdhsa--gfx950"\n.text\n'
for kn, fn in ((NAME + "_k1_kernel", kernel1), (NAME + "_k2_kernel", kernel2)):
    out.clear()
    fn()
    src += ".globl %s\n.p2align 8\n.type %s,@function\n" % (kn, kn) + "\n".join(out) + "\n"
src += '.section .rodata,"a"\n'
for kn, nv in ((NAME + "_k1_kernel", 256), (NAME + "_k2_kernel", 128)):
    src += """.p2align 6
.amdhsa_kernel %s
  .amdhsa_next_free_vgpr %d
  .amdhsa_next_free_sgpr 102
  .amdhsa_accum_offset %d
  .amdhsa_group_segment_fixed_size 0
  .amdhsa_kernarg_size 104
  .amdhsa_user_sgpr_count 2
  .amdhsa_user_sgpr_kernarg_segment_ptr 1
  .amdhsa_system_sgpr_workgroup_id_x 1
.end_amdhsa_kernel
""" % (kn, nv, nv)
open(sys.argv[1] if len(sys.argv) > 1 else "cdna_kernels/%s.s" % NAME, "w").write(src)
```

```python
import struct, sys
NAME = "recurrent_scan__sliding_block_cached__mixer_token_mlp__decode"
R = 15

def f2u(x):
    return struct.unpack("<I", struct.pack("<f", x))[0]
def fh(x):
    return "0x%08x" % f2u(x)

LOG2E = 1.4426950408889634
out = []
def E(s):
    out.append("    " + s)
def L(s):
    out.append(s + ":")

class VM:
    def __init__(self):
        self.q = []
    def issue(self, tag):
        self.q.append(tag)
    def wait(self, tag):
        if tag not in self.q:
            return
        i = len(self.q) - 1 - self.q[::-1].index(tag)
        n = len(self.q) - 1 - i
        assert n <= 63
        E("s_waitcnt vmcnt(%d)" % n)
        self.q = self.q[i + 1:]
    def drain(self):
        E("s_waitcnt vmcnt(0)")
        self.q = []

def srd(d, p, nbytes):
    E("s_mov_b32 s%d, s%d" % (d, p))
    E("s_and_b32 s%d, s%d, 0xffff" % (d + 1, p + 1))
    E("s_mov_b32 s%d, 0x%x" % (d + 2, nbytes))
    E("s_mov_b32 s%d, 0x00020000" % (d + 3))

def rb(vd, vs):
    E("v_cvt_pk_bf16_f32 v%d, v%d, v%d" % (vd, vs, vs))
    E("v_lshlrev_b32 v%d, 16, v%d" % (vd, vd))

def wave_sum(vin, vt, sa):
    E("s_nop 1")
    E("v_add_f32_dpp v%d, v%d, v%d quad_perm:[1,0,3,2] row_mask:0xf bank_mask:0xf" % (vt, vin, vin))
    E("s_nop 1")
    E("v_add_f32_dpp v%d, v%d, v%d quad_perm:[2,3,0,1] row_mask:0xf bank_mask:0xf" % (vt, vt, vt))
    E("s_nop 1")
    E("v_add_f32_dpp v%d, v%d, v%d row_half_mirror row_mask:0xf bank_mask:0xf" % (vt, vt, vt))
    E("s_nop 1")
    E("v_add_f32_dpp v%d, v%d, v%d row_mirror row_mask:0xf bank_mask:0xf" % (vt, vt, vt))
    E("s_nop 1")
    for i in range(4):
        E("v_readlane_b32 s%d, v%d, %d" % (sa + i, vt, 16 * i))
    E("s_nop 1")
    E("v_mov_b32 v%d, s%d" % (vt, sa))
    for i in range(1, 4):
        E("v_add_f32 v%d, s%d, v%d" % (vt, sa + i, vt))

WS_BYTES = 1610612736
PART_OFF = 0
G_OFF = 262144
SP_OFF = 262144 + 4096

XN = 0
HH = 10240
RED = 20480
QB = 45056
ML = 45440
YP = 45696
LDS1 = 46080

def layernorm(xs, tmp, sa, outregs):
    t0, t1, t2, t3, t4, t5 = tmp[:6]
    E("v_add_f32 v%d, v%d, v%d" % (t0, xs[0], xs[1]))
    for i in range(2, 10):
        E("v_add_f32 v%d, v%d, v%d" % (t0, t0, xs[i]))
    wave_sum(t0, t1, sa)
    E("v_mul_f32 v%d, %s, v%d" % (t1, fh(1.0 / 640), t1))
    E("v_sub_f32 v%d, v%d, v%d" % (t2, xs[0], t1))
    E("v_mul_f32 v%d, v%d, v%d" % (t0, t2, t2))
    for i in range(1, 10):
        E("v_sub_f32 v%d, v%d, v%d" % (t2, xs[i], t1))
        E("v_fmac_f32 v%d, v%d, v%d" % (t0, t2, t2))
    wave_sum(t0, t2, sa)
    E("v_mul_f32 v%d, %s, v%d" % (t2, fh(1.0 / 640), t2))
    rb(t1, t1)
    rb(t2, t2)
    E("v_add_f32 v%d, %s, v%d" % (t2, fh(1e-5), t2))
    rb(t2, t2)
    E("v_sqrt_f32 v%d, v%d" % (t2, t2))
    E("s_nop 0")
    rb(t2, t2)
    E("v_rcp_f32 v%d, v%d" % (t3, t2))
    E("s_nop 0")
    for i in range(10):
        E("v_sub_f32 v%d, v%d, v%d" % (t4, xs[i], t1))
        rb(t4, t4)
        E("v_mul_f32 v%d, v%d, v%d" % (t5, t4, t3))
        E("v_fma_f32 v%d, -v%d, v%d, v%d" % (t4, t5, t2, t4))
        E("v_fma_f32 v%d, v%d, v%d, v%d" % (t5, t4, t3, t5))
        rb(outregs[i], t5)

def gemv_tile(base, vp, acc, t0, t1):
    for k in range(12):
        a = acc + (k // 4) * 8 + (k % 4) * 2
        E("v_lshlrev_b32 v%d, 16, v%d" % (t0, base + k))
        E("v_and_b32 v%d, 0xffff0000, v%d" % (t1, base + k))
        E("v_fmac_f32 v%d, v%d, v%d" % (a, vp, t0))
        E("v_fmac_f32 v%d, v%d, v%d" % (a + 1, vp, t1))

import os
STAMP = os.environ.get("STAMP")
stamp_i = [0]
def stamp():
    if not STAMP: return
    i = stamp_i[0]; stamp_i[0] += 1
    E("s_memrealtime s[%d:%d]" % (86 + 2 * i, 87 + 2 * i))
def stamp_flush():
    if not STAMP: return
    n = stamp_i[0]
    if os.environ.get("OST"):
        E("s_waitcnt lgkmcnt(0)")
        E("s_cmp_lg_u32 s3, 0"); E("s_cbranch_scc1 K1_NOST")
        E("s_cmp_lg_u32 s2, 0"); E("s_cbranch_scc1 K1_NOST")
        E("s_mov_b64 exec, 1")
        for i in range(n):
            E("v_mov_b32 v1, s%d" % (86 + 2 * i))
            E("v_mov_b32 v2, 0x80000")
            E("buffer_store_dword v1, v2, s[76:79], 0 offen offset:%d" % (4 * i))
        L("K1_NOST")
        return
    E("s_waitcnt lgkmcnt(0)")
    E("s_mov_b32 s80, s38"); E("s_and_b32 s81, s39, 0xffff"); E("s_mov_b32 s82, 256"); E("s_mov_b32 s83, 0x00020000")
    E("s_cmp_lg_u32 s3, 0"); E("s_cbranch_scc1 K1_NOST")
    E("s_and_b32 s8, s2, 31"); E("s_cmp_lg_u32 s8, 0"); E("s_cbranch_scc1 K1_NOST")
    E("s_lshr_b32 s8, s2, 5"); E("s_lshl_b32 s8, s8, 5")
    E("s_mov_b64 exec, 1")
    for i in range(n):
        E("v_mov_b32 v1, s%d" % (86 + 2 * i))
        E("v_mov_b32 v2, s8")
        E("buffer_store_dword v1, v2, s[80:83], 0 offen offset:%d" % (4 * i))
    L("K1_NOST")

def wave_max(vin, vt, sa):
    E("s_nop 1")
    E("v_max_f32_dpp v%d, v%d, v%d quad_perm:[1,0,3,2] row_mask:0xf bank_mask:0xf" % (vt, vin, vin))
    E("s_nop 1")
    E("v_max_f32_dpp v%d, v%d, v%d quad_perm:[2,3,0,1] row_mask:0xf bank_mask:0xf" % (vt, vt, vt))
    E("s_nop 1")
    E("v_max_f32_dpp v%d, v%d, v%d row_half_mirror row_mask:0xf bank_mask:0xf" % (vt, vt, vt))
    E("s_nop 1")
    E("v_max_f32_dpp v%d, v%d, v%d row_mirror row_mask:0xf bank_mask:0xf" % (vt, vt, vt))
    E("s_nop 1")
    for i in range(4):
        E("v_readlane_b32 s%d, v%d, %d" % (sa + i, vt, 16 * i))
    E("s_nop 1")
    E("v_mov_b32 v%d, s%d" % (vt, sa))
    for i in range(1, 4):
        E("v_max_f32 v%d, s%d, v%d" % (vt, sa + i, vt))

NW = 8
NG = NW * 8
NWQ = 640 // NG
NKV = 512 // NG
RED = 0
QB = RED + NG * 768
ML = QB + 384
YP = ML + NG * 8
XN = YP + 512
HHB = XN + NW * 2560
HH = 0
LDS1 = HHB + NW * 2560

def kernel1():
    vm = VM()
    L(NAME + "_k1_kernel")
    E("s_cmp_ge_u32 s2, 256")
    E("s_cbranch_scc1 K1_END")
    E("s_load_dwordx16 s[16:31], s[0:1], 0")
    E("s_load_dwordx8 s[32:39], s[0:1], 64")
    E("s_load_dwordx2 s[40:41], s[0:1], 96")
    E("v_and_b32 v1, 63, v0")
    E("v_lshrrev_b32 v2, 3, v1")
    E("v_and_b32 v3, 7, v1")
    E("v_lshrrev_b32 v4, 6, v0")
    E("s_nop 0")
    E("v_readfirstlane_b32 s3, v4")
    E("s_and_b32 s4, s2, 7")
    E("s_lshr_b32 s5, s2, 3")
    E("s_and_b32 s6, s5, 3")
    E("s_lshl_b32 s4, s4, 2")
    E("s_add_u32 s4, s4, s6")
    E("s_lshr_b32 s5, s5, 2")
    E("s_waitcnt lgkmcnt(0)")
    stamp()
    sX, sK, sV, sWQ, sW1, sB1, sW2, sB2, sWS = 44, 48, 52, 56, 60, 64, 68, 72, 76
    srd(sX, 16, 1280)
    srd(sK, 18, 402653184)
    srd(sV, 20, 402653184)
    srd(sWQ, 22, 7864320)
    srd(sW1, 28, 3072)
    srd(sB1, 30, 3072)
    srd(sW2, 32, 3072)
    srd(sB2, 34, 2)
    srd(sWS, 40, WS_BYTES)
    E("s_mul_i32 s7, s4, 12582912")
    E("s_lshl_b32 s8, s5, 9")
    E("s_mul_i32 s9, s3, %d" % (NKV * 8))
    E("s_add_u32 s8, s8, s9")
    E("s_add_u32 s8, s8, 28672")
    E("s_mul_i32 s8, s8, 384")
    E("s_add_u32 s7, s7, s8")
    E("v_mul_u32_u24 v5, 384, v2")
    E("v_lshl_add_u32 v5, v3, 4, v5")
    E("v_add_u32 v5, s7, v5")
    E("s_lshl_b32 s8, s3, 3")
    E("v_add_u32 v6, s8, v2")
    E("v_mov_b32 v7, v6")
    E("v_mul_u32_u24 v6, 12288, v6")
    E("v_lshl_add_u32 v6, v3, 4, v6")
    E("s_mul_i32 s8, s4, 384")
    E("v_add_u32 v6, s8, v6")
    E("v_lshlrev_b32 v8, 2, v1")
    E("v_lshlrev_b32 v9, 2, v0")
    ACC = 10
    QF = 34
    SC = 46
    XNV = 54
    TMP = list(range(64, 74))
    B2R = 74
    RING = 76
    XR = 10
    W1R, B1R, W2R = 15, 18, 21
    XS = list(range(24, 34))
    HS = list(range(34, 44))
    for i in range(5):
        E("buffer_load_dword v%d, v8, s[%d:%d], 0 offen offset:%d" % (XR + i, sX, sX + 3, 256 * i))
        vm.issue("x%d" % i)
    E("v_and_b32 v%d, 0x3ff, v9" % TMP[0])
    for i in range(3):
        E("buffer_load_dword v%d, v%d, s[%d:%d], 0 offen offset:%d" % (W1R + i, TMP[0], sW1, sW1 + 3, 1024 * i)); vm.issue("w1")
        E("buffer_load_dword v%d, v%d, s[%d:%d], 0 offen offset:%d" % (B1R + i, TMP[0], sB1, sB1 + 3, 1024 * i)); vm.issue("b1")
        E("buffer_load_dword v%d, v%d, s[%d:%d], 0 offen offset:%d" % (W2R + i, TMP[0], sW2, sW2 + 3, 1024 * i)); vm.issue("w2")
    E("v_mov_b32 v%d, 0" % TMP[1])
    E("buffer_load_ushort v%d, v%d, s[%d:%d], 0 offen" % (B2R, TMP[1], sB2, sB2 + 3)); vm.issue("b2")
    assert RING + 12 * R <= 256
    wq = [("wq", t) for t in range(NWQ)]
    kv = [("k", t) for t in range(NKV)] + [("v", t) for t in range(NKV)]
    order = []
    a, b = list(wq), list(kv)
    om = os.environ.get("ORDER", "inter")
    while a or b:
        for _ in range({"inter": 1, "first": 99, "two": 2}[om]):
            if a: order.append(a.pop(0))
        if b: order.append(b.pop(0))
    free = list(range(R))
    slot = {}
    pending = list(order)
    def issue_next():
        if not pending or not free:
            return False
        tile = pending.pop(0)
        kind, t = tile
        sl = free.pop(0)
        slot[tile] = sl
        base = RING + 12 * sl
        if kind == "wq":
            E("s_mov_b32 s10, %d" % (t * NG * 12288))
            vo, sr, fl = 6, sWQ, (" nt" if os.environ.get("WQNT") else "")
        else:
            E("s_mov_b32 s10, %d" % (t * 3072))
            vo, sr, fl = 5, (sK if kind == "k" else sV), " nt"
        for i in range(3):
            E("buffer_load_dwordx4 v[%d:%d], v%d, s[%d:%d], s10 offen offset:%d%s" % (base + 4 * i, base + 4 * i + 3, vo, sr, sr + 3, 128 * i, fl))
            vm.issue(tile)
        return True
    def release(tile):
        free.append(slot[tile])
    while issue_next():
        pass
    vm.wait("x4")
    for i in range(5):
        E("v_lshlrev_b32 v%d, 16, v%d" % (XS[2 * i], XR + i))
        E("v_and_b32 v%d, 0xffff0000, v%d" % (XS[2 * i + 1], XR + i))
    layernorm(XS, TMP, 80, XS)
    layernorm(XS, TMP, 80, HS)
    E("s_mul_i32 s8, s3, 2560")
    E("v_lshl_add_u32 v%d, v1, 3, s8" % TMP[0])
    for i in range(5):
        E("ds_write_b64 v%d, v[%d:%d] offset:%d" % (TMP[0], XS[2 * i], XS[2 * i + 1], XN + 512 * i))
    E("v_add_u32 v%d, %d, v%d" % (TMP[1], HHB, TMP[0]))
    for i in range(5):
        E("ds_write_b64 v%d, v[%d:%d] offset:%d" % (TMP[1], HS[2 * i], HS[2 * i + 1], HH + 512 * i))
    E("s_waitcnt lgkmcnt(0)")
    E("v_lshl_add_u32 v%d, v7, 2, s8" % TMP[0])
    for t in range(NWQ):
        E("ds_read_b32 v%d, v%d offset:%d" % (XNV + t, TMP[0], XN + NG * 4 * t))
    stamp()
    E("s_cmp_ge_u32 s3, 4")
    E("s_cbranch_scc1 K1_NOB")
    E("s_lshl_b32 s9, s2, 2")
    E("s_add_u32 s9, s9, s8")
    E("s_add_u32 s9, s9, %d" % HHB)
    E("v_mov_b32 v%d, s9" % TMP[1])
    HD = HS[0:3]
    E("ds_read_b32 v%d, v%d offset:%d" % (HD[0], TMP[1], HH))
    E("ds_read_b32 v%d, v%d offset:%d" % (HD[1], TMP[1], HH + 1024))
    E("s_cmp_lt_u32 s2, 128")
    E("s_cselect_b32 s11, 2048, 0")
    E("v_add_u32 v%d, s11, v%d" % (TMP[1], TMP[1]))
    E("ds_read_b32 v%d, v%d offset:%d" % (HD[2], TMP[1], HH))
    vm.wait("b2")
    K1c = -2.0 * LOG2E * 0.7978845608028654
    K2c = K1c * 0.044715
    YA = HS[3:6]
    WF = HS[6:9]
    vk1 = HS[9]
    E("v_mov_b32 v%d, %s" % (vk1, fh(K1c)))
    E("s_mov_b32 s12, %s" % fh(K2c))
    for c in range(3):
        E("v_mov_b32 v%d, 0" % YA[c])
    E("s_waitcnt lgkmcnt(0)")
    t0, t1, t2 = TMP[0:3]
    for i in range(3):
        for half in range(2):
            for (dst, src) in ((WF[0], W1R + i), (WF[1], B1R + i), (WF[2], W2R + i)):
                if half == 0:
                    E("v_lshlrev_b32 v%d, 16, v%d" % (dst, src))
                else:
                    E("v_and_b32 v%d, 0xffff0000, v%d" % (dst, src))
            for c in range(3):
                E("v_mul_f32 v%d, v%d, v%d" % (t0, HD[c], WF[0]))
                rb(t0, t0)
                E("v_add_f32 v%d, v%d, v%d" % (t0, t0, WF[1]))
                rb(t0, t0)
                E("v_mul_f32 v%d, v%d, v%d" % (t1, t0, t0))
                E("v_fma_f32 v%d, v%d, s12, v%d" % (t1, t1, vk1))
                E("v_mul_f32 v%d, v%d, v%d" % (t1, t1, t0))
                E("v_exp_f32 v%d, v%d" % (t1, t1))
                E("s_nop 0")
                E("v_add_f32 v%d, 1.0, v%d" % (t1, t1))
                E("v_rcp_f32 v%d, v%d" % (t1, t1))
                E("s_nop 0")
                E("v_mul_f32 v%d, v%d, v%d" % (t1, t1, t0))
                rb(t1, t1)
                E("v_fmac_f32 v%d, v%d, v%d" % (YA[c], t1, WF[2]))
    for c in range(3):
        wave_sum(YA[c], YA[c], 80)
    E("s_mul_i32 s8, s3, 12")
    E("v_mov_b32 v%d, s8" % t0)
    E("s_mov_b64 s[14:15], exec")
    E("s_mov_b64 exec, 1")
    for c in range(3):
        E("ds_write_b32 v%d, v%d offset:%d" % (t0, YA[c], YP + 4 * c))
    E("s_mov_b64 exec, s[14:15]")
    L("K1_NOB")
    E("s_waitcnt lgkmcnt(0)")
    stamp()
    for a in range(24):
        E("v_mov_b32 v%d, 0" % (ACC + a))
    for t in range(NWQ):
        tile = ("wq", t)
        vm.wait(tile)
        gemv_tile(RING + 12 * slot[tile], XNV + t, ACC, TMP[0], TMP[1])
        release(tile)
        issue_next()
    stamp()
    E("v_mul_u32_u24 v%d, 768, v7" % TMP[2])
    E("v_lshl_add_u32 v%d, v3, 5, v%d" % (TMP[2], TMP[2]))
    def red_write():
        for i in range(3):
            E("ds_write_b128 v%d, v[%d:%d] offset:%d" % (TMP[2], ACC + 8 * i, ACC + 8 * i + 3, RED + 256 * i))
            E("ds_write_b128 v%d, v[%d:%d] offset:%d" % (TMP[2], ACC + 8 * i + 4, ACC + 8 * i + 7, RED + 256 * i + 16))
    red_write()
    E("s_waitcnt lgkmcnt(0)")
    E("s_barrier")
    E("s_cmp_ge_u32 s3, 3")
    E("s_cbranch_scc1 K1_SKIPQ")
    regs = [ACC + g for g in range(24)] + [SC + g for g in range(8)]
    acc = TMP[0]
    for bt in range(NG // 32):
        for g in range(32):
            E("ds_read_b32 v%d, v9 offset:%d" % (regs[g], RED + 768 * (bt * 32 + g)))
        for g in range(32):
            E("s_waitcnt lgkmcnt(%d)" % min(15, 31 - g))
            if bt == 0 and g == 0:
                E("v_mov_b32 v%d, v%d" % (acc, regs[0]))
            else:
                E("v_add_f32 v%d, v%d, v%d" % (acc, acc, regs[g]))
    E("v_cvt_pk_bf16_f32 v%d, v%d, v%d" % (acc, acc, acc))
    E("v_lshlrev_b32 v%d, 1, v0" % TMP[1])
    E("ds_write_b16 v%d, v%d offset:%d" % (TMP[1], acc, QB))
    E("s_branch K1_SKIPB")
    L("K1_SKIPQ")
    E("s_cmp_lg_u32 s3, 3")
    E("s_cbranch_scc1 K1_SKIPB")
    Y = ACC
    for w in range(4):
        E("ds_read_b32 v%d, v8 offset:%d" % (Y + w, YP + 12 * w))
    E("s_waitcnt lgkmcnt(0)")
    y = Y
    for w in range(1, 4):
        E("v_add_f32 v%d, v%d, v%d" % (y, y, Y + w))
    rb(y, y)
    E("v_lshlrev_b32 v%d, 16, v%d" % (B2R, B2R))
    E("v_add_f32 v%d, v%d, v%d" % (y, y, B2R))
    rb(y, y)
    E("v_mul_f32 v%d, %s, v%d" % (Y + 1, fh(-LOG2E), y))
    E("v_exp_f32 v%d, v%d" % (Y + 1, Y + 1))
    E("s_nop 0")
    E("v_add_f32 v%d, 1.0, v%d" % (Y + 1, Y + 1))
    E("v_rcp_f32 v%d, v%d" % (Y + 1, Y + 1))
    E("s_nop 0")
    E("v_mul_f32 v%d, v%d, v%d" % (y, y, Y + 1))
    rb(y, y)
    E("s_cmp_lt_u32 s2, 128")
    E("s_cselect_b32 s8, 7, 3")
    E("s_mov_b32 s9, 0")
    E("s_mov_b64 s[14:15], exec")
    E("s_mov_b64 exec, s[8:9]")
    E("v_lshlrev_b32 v%d, 10, v1" % (Y + 1))
    E("s_lshl_b32 s8, s2, 2")
    E("s_add_u32 s8, s8, %d" % G_OFF)
    E("v_add_u32 v%d, s8, v%d" % (Y + 1, Y + 1))
    E("buffer_store_dword v%d, v%d, s[%d:%d], 0 offen" % (y, Y + 1, sWS, sWS + 3))
    E("s_mov_b64 exec, s[14:15]")
    L("K1_SKIPB")
    E("s_waitcnt lgkmcnt(0)")
    E("s_barrier")
    E("v_lshlrev_b32 v%d, 4, v3" % TMP[0])
    for i in range(3):
        E("ds_read_b128 v[%d:%d], v%d offset:%d" % (QF + 4 * i, QF + 4 * i + 3, TMP[0], QB + 128 * i))
    E("s_waitcnt lgkmcnt(0)")
    stamp()
    scale = 192 ** -0.5
    for t in range(NKV):
        tile = ("k", t)
        vm.wait(tile)
        base = RING + 12 * slot[tile]
        a = TMP[0]
        E("v_dot2_f32_bf16 v%d, v%d, v%d, 0" % (a, base, QF))
        for k in range(1, 12):
            E("v_dot2_f32_bf16 v%d, v%d, v%d, v%d" % (a, base + k, QF + k, a))
        release(tile)
        if not issue_next():
            E("s_nop 2")
        E("v_add_f32_dpp v%d, v%d, v%d quad_perm:[1,0,3,2] row_mask:0xf bank_mask:0xf" % (a, a, a))
        E("s_nop 1")
        E("v_add_f32_dpp v%d, v%d, v%d quad_perm:[2,3,0,1] row_mask:0xf bank_mask:0xf" % (a, a, a))
        E("s_nop 1")
        E("v_add_f32_dpp v%d, v%d, v%d row_half_mirror row_mask:0xf bank_mask:0xf" % (a, a, a))
        rb(a, a)
        E("v_mul_f32 v%d, %s, v%d" % (a, fh(scale), a))
        rb(SC + t, a)
    stamp()
    vmx, vl = TMP[4], TMP[5]
    E("v_max_f32 v%d, v%d, v%d" % (vmx, SC, SC + 1))
    for t in range(2, NKV):
        E("v_max_f32 v%d, v%d, v%d" % (vmx, vmx, SC + t))
    for t in range(NKV):
        E("v_sub_f32 v%d, v%d, v%d" % (SC + t, SC + t, vmx))
        E("v_mul_f32 v%d, %s, v%d" % (SC + t, fh(LOG2E), SC + t))
        E("v_exp_f32 v%d, v%d" % (SC + t, SC + t))
    E("s_nop 0")
    E("v_add_f32 v%d, v%d, v%d" % (vl, SC, SC + 1))
    for t in range(2, NKV):
        E("v_add_f32 v%d, v%d, v%d" % (vl, vl, SC + t))
    for a in range(24):
        E("v_mov_b32 v%d, 0" % (ACC + a))
    for t in range(NKV):
        tile = ("v", t)
        vm.wait(tile)
        gemv_tile(RING + 12 * slot[tile], SC + t, ACC, TMP[0], TMP[1])
        release(tile)
        issue_next()
    stamp()
    red_write()
    E("v_lshlrev_b32 v%d, 3, v7" % TMP[0])
    E("ds_write_b64 v%d, v[%d:%d] offset:%d" % (TMP[0], vmx, vl, ML))
    E("s_waitcnt lgkmcnt(0)")
    E("s_barrier")
    E("s_cmp_ge_u32 s3, 3")
    E("s_cbranch_scc1 K1_END")
    AR = RING
    MLV = TMP[4]
    E("v_lshlrev_b32 v%d, 3, v1" % TMP[0])
    E("ds_read_b64 v[%d:%d], v%d offset:%d" % (MLV, MLV + 1, TMP[0], ML))
    for g in range(NG):
        E("ds_read_b32 v%d, v9 offset:%d" % (AR + g, RED + 768 * g))
    E("s_waitcnt lgkmcnt(15)")
    M, LS = TMP[6], TMP[7]
    wave_max(MLV, M, 80)
    E("v_sub_f32 v%d, v%d, v%d" % (MLV, MLV, M))
    E("v_mul_f32 v%d, %s, v%d" % (MLV, fh(LOG2E), MLV))
    E("v_exp_f32 v%d, v%d" % (MLV, MLV))
    E("s_nop 0")
    E("v_mul_f32 v%d, v%d, v%d" % (MLV + 1, MLV, MLV + 1))
    wave_sum(MLV + 1, LS, 80)
    O = TMP[1]
    E("v_mov_b32 v%d, 0" % O)
    E("s_waitcnt lgkmcnt(0)")
    for g0 in range(0, NG, 4):
        for i in range(4):
            E("v_readlane_b32 s%d, v%d, %d" % (80 + i, MLV, g0 + i))
        E("s_nop 0")
        for i in range(4):
            E("v_fmac_f32 v%d, s%d, v%d" % (O, 80 + i, AR + g0 + i))
    E("s_lshl_b32 s8, s4, 3")
    E("s_add_u32 s8, s8, s5")
    E("s_lshl_b32 s8, s8, 10")
    E("v_add_u32 v%d, s8, v9" % TMP[0])
    E("buffer_store_dword v%d, v%d, s[%d:%d], 0 offen" % (O, TMP[0], sWS, sWS + 3))
    E("v_mov_b32 v%d, s8" % TMP[0])
    E("s_mov_b64 exec, 1")
    E("buffer_store_dwordx2 v[%d:%d], v%d, s[%d:%d], 0 offen offset:768" % (M, M + 1, TMP[0], sWS, sWS + 3))
    stamp()
    stamp_flush()
    L("K1_END")
    E("s_endpgm")

def kernel2():
    vm = VM()
    L(NAME + "_k2_kernel")
    E("s_cmp_ge_u32 s2, 320")
    E("s_cbranch_scc1 K2_END")
    if os.environ.get("OST"): E("s_memrealtime s[90:91]")
    E("s_load_dwordx16 s[16:31], s[0:1], 0")
    E("s_load_dwordx8 s[32:39], s[0:1], 64")
    E("s_load_dwordx2 s[40:41], s[0:1], 96")
    E("s_mov_b32 s5, 429496730")
    E("s_mul_hi_u32 s4, s2, s5")
    E("s_mul_i32 s5, s4, 10")
    E("s_sub_u32 s5, s2, s5")
    E("v_lshrrev_b32 v4, 6, v0")
    E("s_nop 0")
    E("v_readfirstlane_b32 s3, v4")
    E("v_lshrrev_b32 v2, 3, v0")
    E("v_and_b32 v3, 7, v0")
    E("v_lshlrev_b32 v9, 2, v0")
    E("s_waitcnt lgkmcnt(0)")
    sX, sWO, sOUT, sDBG, sWS = 44, 48, 52, 56, 60
    srd(sX, 16, 1280)
    srd(sWO, 24, 7864320)
    srd(sOUT, 36, 1280)
    srd(sDBG, 38, 256)
    srd(sWS, 40, WS_BYTES)
    E("s_lshl_b32 s8, s4, 13")
    E("v_add_u32 v5, s8, v9")
    E("v_mov_b32 v6, s8")
    OP = 10
    MLP = 18
    for s in range(8):
        E("buffer_load_dwordx2 v[%d:%d], v6, s[%d:%d], 0 offen offset:%d" % (MLP + 2 * s, MLP + 2 * s + 1, sWS, sWS + 3, 768))
        vm.issue("ml")
        E("buffer_load_dword v%d, v5, s[%d:%d], 0 offen" % (OP + s, sWS, sWS + 3))
        vm.issue("op")
        if s < 7:
            E("v_add_u32 v5, 1024, v5")
            E("v_add_u32 v6, 1024, v6")
    E("s_mul_i32 s8, s4, 192")
    E("v_add_u32 v7, s8, v2")
    E("v_mul_u32_u24 v7, 1280, v7")
    E("v_lshl_add_u32 v7, v3, 4, v7")
    E("s_lshl_b32 s8, s5, 7")
    E("v_add_u32 v7, s8, v7")
    WOR = 40
    for p in range(6):
        E("s_mov_b32 s10, %d" % (p * 40960))
        E("buffer_load_dwordx4 v[%d:%d], v7, s[%d:%d], s10 offen nt" % (WOR + 4 * p, WOR + 4 * p + 3, sWO, sWO + 3))
        vm.issue("wo%d" % p)
    vm.wait("op")
    M, O, LS, T = 34, 35, 36, 37
    E("v_max_f32 v%d, v%d, v%d" % (M, MLP, MLP + 2))
    for s in range(2, 8):
        E("v_max_f32 v%d, v%d, v%d" % (M, M, MLP + 2 * s))
    E("v_mov_b32 v%d, 0" % O)
    E("v_mov_b32 v%d, 0" % LS)
    for s in range(8):
        E("v_sub_f32 v%d, v%d, v%d" % (MLP + 2 * s, MLP + 2 * s, M))
        E("v_mul_f32 v%d, %s, v%d" % (MLP + 2 * s, fh(LOG2E), MLP + 2 * s))
        E("v_exp_f32 v%d, v%d" % (MLP + 2 * s, MLP + 2 * s))
    E("s_nop 0")
    for s in range(8):
        E("v_fmac_f32 v%d, v%d, v%d" % (O, MLP + 2 * s, OP + s))
        E("v_fmac_f32 v%d, v%d, v%d" % (LS, MLP + 2 * s, MLP + 2 * s + 1))
    E("v_rcp_f32 v%d, v%d" % (T, LS))
    E("s_nop 0")
    E("v_mul_f32 v%d, v%d, v%d" % (M, O, T))
    E("v_fma_f32 v%d, -v%d, v%d, v%d" % (O, M, LS, O))
    E("v_fma_f32 v%d, v%d, v%d, v%d" % (M, O, T, M))
    rb(M, M)
    E("ds_write_b32 v9, v%d" % M)
    E("s_waitcnt lgkmcnt(0)")
    E("s_barrier")
    E("v_lshlrev_b32 v8, 2, v2")
    OV = 10
    for p in range(6):
        E("ds_read_b32 v%d, v8 offset:%d" % (OV + p, 128 * p))
    AC = 20
    for a in range(8):
        E("v_mov_b32 v%d, 0" % (AC + a))
    E("s_waitcnt lgkmcnt(0)")
    for p in range(6):
        vm.wait("wo%d" % p)
        for k in range(4):
            E("v_lshlrev_b32 v%d, 16, v%d" % (T, WOR + 4 * p + k))
            E("v_and_b32 v%d, 0xffff0000, v%d" % (T + 1, WOR + 4 * p + k))
            E("v_fmac_f32 v%d, v%d, v%d" % (AC + 2 * k, OV + p, T))
            E("v_fmac_f32 v%d, v%d, v%d" % (AC + 2 * k + 1, OV + p, T + 1))
    E("v_lshlrev_b32 v8, 8, v2")
    E("v_lshl_add_u32 v8, v3, 5, v8")
    E("ds_write_b128 v8, v[%d:%d] offset:1024" % (AC, AC + 3))
    E("ds_write_b128 v8, v[%d:%d] offset:1040" % (AC + 4, AC + 7))
    E("s_waitcnt lgkmcnt(0)")
    E("s_barrier")
    E("s_cmp_lg_u32 s3, 0")
    E("s_cbranch_scc1 K2_END")
    RR = 64
    for g in range(32):
        E("ds_read_b32 v%d, v9 offset:%d" % (RR + g, 1024 + 256 * g))
    E("s_waitcnt lgkmcnt(0)")
    for g in range(1, 32):
        E("v_add_f32 v%d, v%d, v%d" % (RR, RR, RR + g))
    E("s_lshl_b32 s8, s5, 5")
    E("s_add_u32 s8, s8, s4")
    E("s_lshl_b32 s8, s8, 8")
    E("s_add_u32 s8, s8, %d" % SP_OFF)
    E("v_add_u32 v8, s8, v9")
    E("buffer_store_dword v%d, v8, s[%d:%d], 0 offen sc1" % (RR, sWS, sWS + 3))
    E("s_waitcnt vmcnt(0)")
    E("s_lshl_b32 s8, s5, 2")
    E("v_mov_b32 v8, s8")
    E("v_mov_b32 v10, 1")
    E("s_mov_b64 s[14:15], exec")
    E("s_mov_b64 exec, 1")
    E("buffer_atomic_add v10, v8, s[%d:%d], 0 offen sc0" % (sDBG, sDBG + 3))
    E("s_waitcnt vmcnt(0)")
    E("s_mov_b64 exec, s[14:15]")
    E("v_readfirstlane_b32 s8, v10")
    E("s_cmp_lg_u32 s8, 31")
    E("s_cbranch_scc1 K2_END")
    E("s_lshl_b32 s8, s5, 13")
    E("s_add_u32 s8, s8, %d" % SP_OFF)
    E("v_add_u32 v8, s8, v9")
    for g in range(32):
        if g % 16 == 0 and g:
            E("v_add_u32 v8, 4096, v8")
        E("buffer_load_dword v%d, v8, s[%d:%d], 0 offen offset:%d sc1" % (RR + g, sWS, sWS + 3, 256 * (g % 16)))
    E("s_lshl_b32 s8, s5, 8")
    E("s_add_u32 s9, s8, %d" % G_OFF)
    E("v_add_u32 v10, s9, v9")
    E("buffer_load_dword v11, v10, s[%d:%d], 0 offen" % (sWS, sWS + 3))
    E("s_lshl_b32 s8, s5, 7")
    E("v_lshlrev_b32 v12, 1, v0")
    E("v_add_u32 v12, s8, v12")
    E("buffer_load_ushort v13, v12, s[%d:%d], 0 offen" % (sX, sX + 3))
    E("s_waitcnt vmcnt(0)")
    for g in range(1, 32):
        E("v_add_f32 v%d, v%d, v%d" % (RR, RR, RR + g))
    rb(RR, RR)
    E("v_mul_f32 v%d, v%d, v11" % (RR, RR))
    rb(RR, RR)
    E("v_lshlrev_b32 v13, 16, v13")
    E("v_add_f32 v%d, v%d, v13" % (RR, RR))
    E("v_cvt_pk_bf16_f32 v%d, v%d, v%d" % (RR, RR, RR))
    E("buffer_store_short v%d, v12, s[%d:%d], 0 offen" % (RR, sOUT, sOUT + 3))
    if os.environ.get("OST"):
        E("s_cmp_lg_u32 s5, 0"); E("s_cbranch_scc1 K2_END")
        E("s_memrealtime s[92:93]")
        E("v_mov_b32 v2, 0x80000")
        E("buffer_load_dwordx4 v[20:23], v2, s[60:63], 0 offen")
        E("buffer_load_dwordx4 v[24:27], v2, s[60:63], 0 offen offset:16")
        E("s_waitcnt vmcnt(0) lgkmcnt(0)")
        E("v_sub_u32 v30, v21, v20")
        E("v_sub_u32 v31, v24, v20")
        E("v_sub_u32 v32, v26, v20")
        E("v_sub_u32 v33, v27, v20")
        E("v_sub_u32 v34, s90, v20")
        E("v_sub_u32 v35, s92, v20")
        E("v_mov_b32 v2, 40")
        E("s_mov_b64 exec, 1")
        E("buffer_store_dwordx4 v[30:33], v2, s[56:59], 0 offen")
        E("buffer_store_dwordx2 v[34:35], v2, s[56:59], 0 offen offset:16")
    L("K2_END")
    E("s_endpgm")

hdr = open("cdna_kernels/%s.s.ref" % NAME).read().split("\n")
head = [l for l in hdr if l.startswith(";") and "@launch" not in l and "Override launch" not in l and "grid=ceil" not in l]
head = head[:15]
src = "\n".join(head) + "\n"
src += "; @launch kernel=%s_k1_kernel grid=(256,1,1) block=(512,1,1) lds=%d\n" % (NAME, LDS1)
src += "; @launch kernel=%s_k2_kernel grid=(320,1,1) block=(256,1,1) lds=9216\n" % NAME
src += '.amdgcn_target "amdgcn-amd-amdhsa--gfx950"\n.text\n'
for kn, fn in ((NAME + "_k1_kernel", kernel1), (NAME + "_k2_kernel", kernel2)):
    out.clear()
    fn()
    src += ".globl %s\n.p2align 8\n.type %s,@function\n" % (kn, kn) + "\n".join(out) + "\n"
src += '.section .rodata,"a"\n'
for kn, nv in ((NAME + "_k1_kernel", 256), (NAME + "_k2_kernel", 128)):
    src += """.p2align 6
.amdhsa_kernel %s
  .amdhsa_next_free_vgpr %d
  .amdhsa_next_free_sgpr 102
  .amdhsa_accum_offset %d
  .amdhsa_group_segment_fixed_size 0
  .amdhsa_kernarg_size 104
  .amdhsa_user_sgpr_count 2
  .amdhsa_user_sgpr_kernarg_segment_ptr 1
  .amdhsa_system_sgpr_workgroup_id_x 1
.end_amdhsa_kernel
""" % (kn, nv, nv)
open(sys.argv[1] if len(sys.argv) > 1 else "cdna_kernels/%s.s" % NAME, "w").write(src)
```

```python
import struct, sys
NAME = "recurrent_scan__sliding_block_cached__mixer_token_mlp__decode"
R = 13

def f2u(x):
    return struct.unpack("<I", struct.pack("<f", x))[0]
def fh(x):
    return "0x%08x" % f2u(x)

LOG2E = 1.4426950408889634
out = []
def E(s):
    out.append("    " + s)
def L(s):
    out.append(s + ":")

class VM:
    def __init__(self):
        self.q = []
        self.total = 0
    def issue(self, tag):
        self.q.append(tag)
        self.total += 1
    def wait(self, tag):
        if tag not in self.q:
            return
        i = len(self.q) - 1 - self.q[::-1].index(tag)
        n = len(self.q) - 1 - i
        assert n <= 63
        E("s_waitcnt vmcnt(%d)" % n)
        self.q = self.q[i + 1:]
    def drain(self):
        E("s_waitcnt vmcnt(0)")
        self.q = []

def srd(d, p, nbytes):
    E("s_mov_b32 s%d, s%d" % (d, p))
    E("s_and_b32 s%d, s%d, 0xffff" % (d + 1, p + 1))
    E("s_mov_b32 s%d, 0x%x" % (d + 2, nbytes))
    E("s_mov_b32 s%d, 0x00020000" % (d + 3))

def rb(vd, vs):
    E("v_cvt_pk_bf16_f32 v%d, v%d, v%d" % (vd, vs, vs))
    E("v_lshlrev_b32 v%d, 16, v%d" % (vd, vd))

def wave_sum(vin, vt, sa):
    E("s_nop 1")
    E("v_add_f32_dpp v%d, v%d, v%d quad_perm:[1,0,3,2] row_mask:0xf bank_mask:0xf" % (vt, vin, vin))
    E("s_nop 1")
    E("v_add_f32_dpp v%d, v%d, v%d quad_perm:[2,3,0,1] row_mask:0xf bank_mask:0xf" % (vt, vt, vt))
    E("s_nop 1")
    E("v_add_f32_dpp v%d, v%d, v%d row_half_mirror row_mask:0xf bank_mask:0xf" % (vt, vt, vt))
    E("s_nop 1")
    E("v_add_f32_dpp v%d, v%d, v%d row_mirror row_mask:0xf bank_mask:0xf" % (vt, vt, vt))
    E("s_nop 1")
    for i in range(4):
        E("v_readlane_b32 s%d, v%d, %d" % (sa + i, vt, 16 * i))
    E("s_nop 1")
    E("v_mov_b32 v%d, s%d" % (vt, sa))
    for i in range(1, 4):
        E("v_add_f32 v%d, s%d, v%d" % (vt, sa + i, vt))

WS_BYTES = 1610612736
PART_OFF = 0
G_OFF = 524288
SP_OFF = 524288 + 8192

XN = 0
HH = 10240
RED = 20480
QB = 45056
ML = 45440
YP = 45696
LDS1 = 46080

def layernorm(xs, tmp, sa, outregs):
    t0, t1, t2, t3, t4, t5 = tmp[:6]
    E("v_add_f32 v%d, v%d, v%d" % (t0, xs[0], xs[1]))
    for i in range(2, 10):
        E("v_add_f32 v%d, v%d, v%d" % (t0, t0, xs[i]))
    wave_sum(t0, t1, sa)
    E("v_mul_f32 v%d, %s, v%d" % (t1, fh(1.0 / 640), t1))
    E("v_sub_f32 v%d, v%d, v%d" % (t2, xs[0], t1))
    E("v_mul_f32 v%d, v%d, v%d" % (t0, t2, t2))
    for i in range(1, 10):
        E("v_sub_f32 v%d, v%d, v%d" % (t2, xs[i], t1))
        E("v_fmac_f32 v%d, v%d, v%d" % (t0, t2, t2))
    wave_sum(t0, t2, sa)
    E("v_mul_f32 v%d, %s, v%d" % (t2, fh(1.0 / 640), t2))
    rb(t1, t1)
    rb(t2, t2)
    E("v_add_f32 v%d, %s, v%d" % (t2, fh(1e-5), t2))
    rb(t2, t2)
    E("v_sqrt_f32 v%d, v%d" % (t2, t2))
    E("s_nop 0")
    rb(t2, t2)
    E("v_rcp_f32 v%d, v%d" % (t3, t2))
    E("s_nop 0")
    for i in range(10):
        E("v_sub_f32 v%d, v%d, v%d" % (t4, xs[i], t1))
        rb(t4, t4)
        E("v_mul_f32 v%d, v%d, v%d" % (t5, t4, t3))
        E("v_fma_f32 v%d, -v%d, v%d, v%d" % (t4, t5, t2, t4))
        E("v_fma_f32 v%d, v%d, v%d, v%d" % (t5, t4, t3, t5))
        rb(outregs[i], t5)

def gemv_tile(base, vp, acc, t0, t1):
    for k in range(12):
        a = acc + (k // 4) * 8 + (k % 4) * 2
        E("v_lshlrev_b32 v%d, 16, v%d" % (t0, base + k))
        E("v_and_b32 v%d, 0xffff0000, v%d" % (t1, base + k))
        E("v_fmac_f32 v%d, v%d, v%d" % (a, vp, t0))
        E("v_fmac_f32 v%d, v%d, v%d" % (a + 1, vp, t1))

import os
STAMP = os.environ.get("STAMP")
stamp_i = [0]
def sreg(i):
    return 96 if i == 0 else 14 + 2 * i
def stamp():
    if not STAMP: return
    i = stamp_i[0]; stamp_i[0] += 1
    assert i <= 10
    E("s_memrealtime s[%d:%d]" % (sreg(i), sreg(i) + 1))
def stamp_flush():
    if not STAMP: return
    n = stamp_i[0]
    E("s_waitcnt lgkmcnt(0)")
    E("s_cmp_lg_u32 s3, 0"); E("s_cbranch_scc1 K1_NOST")
    E("s_and_b32 s8, s2, 31"); E("s_cmp_lg_u32 s8, 0"); E("s_cbranch_scc1 K1_NOST")
    E("s_lshl_b32 s8, s2, 1"); E("s_add_u32 s8, s8, 0x100000")
    E("s_mov_b64 exec, 1")
    for i in range(n):
        E("v_mov_b32 v1, s%d" % sreg(i))
        E("v_mov_b32 v2, s8")
        E("buffer_store_dword v1, v2, s[76:79], 0 offen offset:%d" % (4 * i))
    L("K1_NOST")

def wave_max(vin, vt, sa):
    E("s_nop 1")
    E("v_max_f32_dpp v%d, v%d, v%d quad_perm:[1,0,3,2] row_mask:0xf bank_mask:0xf" % (vt, vin, vin))
    E("s_nop 1")
    E("v_max_f32_dpp v%d, v%d, v%d quad_perm:[2,3,0,1] row_mask:0xf bank_mask:0xf" % (vt, vt, vt))
    E("s_nop 1")
    E("v_max_f32_dpp v%d, v%d, v%d row_half_mirror row_mask:0xf bank_mask:0xf" % (vt, vt, vt))
    E("s_nop 1")
    E("v_max_f32_dpp v%d, v%d, v%d row_mirror row_mask:0xf bank_mask:0xf" % (vt, vt, vt))
    E("s_nop 1")
    for i in range(4):
        E("v_readlane_b32 s%d, v%d, %d" % (sa + i, vt, 16 * i))
    E("s_nop 1")
    E("v_mov_b32 v%d, s%d" % (vt, sa))
    for i in range(1, 4):
        E("v_max_f32 v%d, s%d, v%d" % (vt, sa + i, vt))

NW = 4
NG = NW * 8
NWQ = 640 // NG
NKV = 512 // NG
RED = 0
QB = RED + NG * 768
ML = QB + 384
YP = ML + NG * 8
XN = YP + 512
HHB = XN + NW * 2560
HH = 0
LDS1 = HHB + NW * 2560

def kernel1():
    vm = VM()
    L(NAME + "_kernel")
    E("s_cmp_ge_u32 s2, 256")
    E("s_cbranch_scc1 K1_END")
    E("s_load_dwordx16 s[16:31], s[0:1], 0")
    E("s_load_dwordx8 s[32:39], s[0:1], 64")
    E("s_load_dwordx2 s[40:41], s[0:1], 96")
    E("v_and_b32 v1, 63, v0")
    E("v_lshrrev_b32 v2, 3, v1")
    E("v_and_b32 v3, 7, v1")
    E("v_lshrrev_b32 v4, 6, v0")
    E("s_nop 0")
    E("v_readfirstlane_b32 s3, v4")
    E("s_and_b32 s4, s2, 7")
    E("s_lshr_b32 s5, s2, 3")
    E("s_and_b32 s6, s5, 3")
    E("s_lshl_b32 s4, s4, 2")
    E("s_add_u32 s4, s4, s6")
    E("s_lshr_b32 s5, s5, 2")
    E("s_waitcnt lgkmcnt(0)")
    stamp()
    sX, sK, sV, sWQ, sW1, sB1, sW2, sB2, sWS = 44, 48, 52, 56, 60, 64, 68, 72, 76
    srd(sX, 16, 1280)
    srd(sK, 18, 402653184)
    srd(sV, 20, 402653184)
    srd(sWQ, 22, 7864320)
    srd(sW1, 28, 3072)
    srd(sB1, 30, 3072)
    srd(sW2, 32, 3072)
    srd(sB2, 34, 2)
    srd(sWS, 40, WS_BYTES)
    E("s_mov_b32 s13, s5")
    E("s_mul_i32 s7, s4, 12582912")
    E("s_lshl_b32 s8, s5, 9")
    E("s_mul_i32 s9, s3, %d" % (NKV * 8))
    E("s_add_u32 s8, s8, s9")
    E("s_add_u32 s8, s8, 28672")
    E("s_mul_i32 s8, s8, 384")
    E("s_add_u32 s7, s7, s8")
    E("v_mul_u32_u24 v5, 384, v2")
    E("v_lshl_add_u32 v5, v3, 4, v5")
    E("v_add_u32 v5, s7, v5")
    E("s_lshl_b32 s8, s3, 3")
    E("v_add_u32 v6, s8, v2")
    E("v_mov_b32 v7, v6")
    E("v_mul_u32_u24 v6, 12288, v6")
    E("v_lshl_add_u32 v6, v3, 4, v6")
    E("s_mul_i32 s8, s4, 384")
    E("v_add_u32 v6, s8, v6")
    E("v_lshlrev_b32 v8, 2, v1")
    E("v_lshlrev_b32 v9, 2, v0")
    ACC = 10
    QF = 34
    SC = 46
    XNV = 62
    TMP = list(range(82, 92))
    B2R = 92
    VWO = 93
    RING = 256 - 12 * R
    assert RING >= 96
    XR = 10
    W1R, B1R, W2R = 15, 18, 21
    XS = list(range(24, 34))
    HS = list(range(34, 44))
    for i in range(5):
        E("buffer_load_dword v%d, v8, s[%d:%d], 0 offen offset:%d" % (XR + i, sX, sX + 3, 256 * i))
        vm.issue("x%d" % i)
    E("v_and_b32 v%d, 0x3ff, v9" % TMP[0])
    for i in range(3):
        E("buffer_load_dword v%d, v%d, s[%d:%d], 0 offen offset:%d" % (W1R + i, TMP[0], sW1, sW1 + 3, 1024 * i)); vm.issue("w1")
        E("buffer_load_dword v%d, v%d, s[%d:%d], 0 offen offset:%d" % (B1R + i, TMP[0], sB1, sB1 + 3, 1024 * i)); vm.issue("b1")
        E("buffer_load_dword v%d, v%d, s[%d:%d], 0 offen offset:%d" % (W2R + i, TMP[0], sW2, sW2 + 3, 1024 * i)); vm.issue("w2")
    E("v_mov_b32 v%d, 0" % TMP[1])
    E("buffer_load_ushort v%d, v%d, s[%d:%d], 0 offen" % (B2R, TMP[1], sB2, sB2 + 3)); vm.issue("b2")
    assert RING + 12 * R <= 256
    wq = [("wq", t) for t in range(NWQ)]
    kv = [("k", t) for t in range(NKV)] + [("v", t) for t in range(NKV)]
    qa, qb = list(wq), list(kv) + [("wo", 0), ("wo", 1), ("wo", 2)]
    WQS = int(os.environ.get("WQS", "4"))
    state = {"held": 0, "last": "kv"}
    def pick():
        if qa and (not qb or state["held"] >= R - WQS or state["last"] == "kv"):
            state["last"] = "wq"
            return qa.pop(0)
        if qb:
            state["last"] = "kv"
            state["held"] += 1
            return qb.pop(0)
        return None
    sWO, sDBG, sOUT = 84, 88, 92
    free = list(range(R))
    slot = {}
    def issue_next():
        if not free:
            return False
        tile = pick()
        if tile is None:
            return False
        kind, t = tile
        sl = free.pop(0)
        slot[tile] = sl
        base = RING + 12 * sl
        if kind == "wo":
            for i in range(3):
                p = t * 3 + i
                if p < 8:
                    E("s_mov_b32 s10, %d" % (p * 30720))
                    E("buffer_load_dwordx4 v[%d:%d], v%d, s[%d:%d], s10 offen nt" % (base + 4 * i, base + 4 * i + 3, VWO, sWO, sWO + 3))
                    vm.issue(tile)
            return True
        if kind == "wq":
            E("s_mov_b32 s10, %d" % (t * NG * 12288))
            vo, sr, fl = 6, sWQ, (" nt" if os.environ.get("WQNT") else "")
        else:
            E("s_mov_b32 s10, %d" % (t * 3072))
            vo, sr, fl = 5, (sK if kind == "k" else sV), " nt"
        for i in range(3):
            E("buffer_load_dwordx4 v[%d:%d], v%d, s[%d:%d], s10 offen offset:%d%s" % (base + 4 * i, base + 4 * i + 3, vo, sr, sr + 3, 128 * i, fl))
            vm.issue(tile)
        return True
    def release(tile):
        free.append(slot[tile])
        if tile[0] != "wq":
            state["held"] -= 1
    srd(sWO, 24, 7864320)
    srd(sDBG, 38, 256)
    srd(sOUT, 36, 1280)
    E("v_mul_u32_u24 v%d, 205, v0" % TMP[0])
    E("v_lshrrev_b32 v%d, 11, v%d" % (TMP[0], TMP[0]))
    E("v_mul_u32_u24 v%d, 10, v%d" % (TMP[1], TMP[0]))
    E("v_sub_u32 v%d, v0, v%d" % (TMP[1], TMP[1]))
    E("s_mul_i32 s8, s4, 192")
    E("v_add_u32 v%d, s8, v%d" % (VWO, TMP[0]))
    E("v_mul_u32_u24 v%d, 1280, v%d" % (VWO, VWO))
    E("v_lshl_add_u32 v%d, v%d, 4, v%d" % (VWO, TMP[1], VWO))
    E("s_mul_i32 s8, s13, 160")
    E("v_add_u32 v%d, s8, v%d" % (VWO, VWO))
    while issue_next():
        pass
    NV = 94
    E("s_memrealtime s[98:99]")
    E("s_waitcnt lgkmcnt(0)")
    E("s_or_b32 s98, s98, 1")
    E("v_mov_b32 v%d, s98" % NV)
    E("v_mov_b32 v%d, 0" % (NV + 1))
    E("v_mov_b32 v%d, 0" % TMP[2])
    E("s_cmp_lg_u32 s3, 0")
    E("s_cbranch_scc1 K1_NONONCE")
    E("s_mov_b64 exec, 1")
    E("buffer_atomic_cmpswap v[%d:%d], v%d, s[%d:%d], 0 offen sc0" % (NV, NV + 1, TMP[2], sDBG, sDBG + 3))
    E("s_mov_b64 exec, -1")
    L("K1_NONONCE")
    nonce_mark = vm.total
    vm.wait("x4")
    for i in range(5):
        E("v_lshlrev_b32 v%d, 16, v%d" % (XS[2 * i], XR + i))
        E("v_and_b32 v%d, 0xffff0000, v%d" % (XS[2 * i + 1], XR + i))
    layernorm(XS, TMP, 80, XS)
    layernorm(XS, TMP, 80, HS)
    E("s_mul_i32 s8, s3, 2560")
    E("v_lshl_add_u32 v%d, v1, 3, s8" % TMP[0])
    for i in range(5):
        E("ds_write_b64 v%d, v[%d:%d] offset:%d" % (TMP[0], XS[2 * i], XS[2 * i + 1], XN + 512 * i))
    E("v_add_u32 v%d, %d, v%d" % (TMP[1], HHB, TMP[0]))
    for i in range(5):
        E("ds_write_b64 v%d, v[%d:%d] offset:%d" % (TMP[1], HS[2 * i], HS[2 * i + 1], HH + 512 * i))
    E("s_waitcnt lgkmcnt(0)")
    E("v_lshl_add_u32 v%d, v7, 2, s8" % TMP[0])
    for t in range(NWQ):
        E("ds_read_b32 v%d, v%d offset:%d" % (XNV + t, TMP[0], XN + NG * 4 * t))
    stamp()
    E("s_cmp_ge_u32 s3, 4")
    E("s_cbranch_scc1 K1_NOB")
    E("s_lshl_b32 s9, s2, 2")
    E("s_add_u32 s9, s9, s8")
    E("s_add_u32 s9, s9, %d" % HHB)
    E("v_mov_b32 v%d, s9" % TMP[1])
    HD = HS[0:3]
    E("ds_read_b32 v%d, v%d offset:%d" % (HD[0], TMP[1], HH))
    E("ds_read_b32 v%d, v%d offset:%d" % (HD[1], TMP[1], HH + 1024))
    E("s_cmp_lt_u32 s2, 128")
    E("s_cselect_b32 s11, 2048, 0")
    E("v_add_u32 v%d, s11, v%d" % (TMP[1], TMP[1]))
    E("ds_read_b32 v%d, v%d offset:%d" % (HD[2], TMP[1], HH))
    vm.wait("b2")
    K1c = -2.0 * LOG2E * 0.7978845608028654
    K2c = K1c * 0.044715
    YA = HS[3:6]
    WF = HS[6:9]
    vk1 = HS[9]
    E("v_mov_b32 v%d, %s" % (vk1, fh(K1c)))
    E("s_mov_b32 s12, %s" % fh(K2c))
    for c in range(3):
        E("v_mov_b32 v%d, 0" % YA[c])
    E("s_waitcnt lgkmcnt(0)")
    t0, t1, t2 = TMP[0:3]
    for i in range(3):
        for half in range(2):
            for (dst, src) in ((WF[0], W1R + i), (WF[1], B1R + i), (WF[2], W2R + i)):
                if half == 0:
                    E("v_lshlrev_b32 v%d, 16, v%d" % (dst, src))
                else:
                    E("v_and_b32 v%d, 0xffff0000, v%d" % (dst, src))
            for c in range(3):
                E("v_mul_f32 v%d, v%d, v%d" % (t0, HD[c], WF[0]))
                rb(t0, t0)
                E("v_add_f32 v%d, v%d, v%d" % (t0, t0, WF[1]))
                rb(t0, t0)
                E("v_mul_f32 v%d, v%d, v%d" % (t1, t0, t0))
                E("v_fma_f32 v%d, v%d, s12, v%d" % (t1, t1, vk1))
                E("v_mul_f32 v%d, v%d, v%d" % (t1, t1, t0))
                E("v_exp_f32 v%d, v%d" % (t1, t1))
                E("s_nop 0")
                E("v_add_f32 v%d, 1.0, v%d" % (t1, t1))
                E("v_rcp_f32 v%d, v%d" % (t1, t1))
                E("s_nop 0")
                E("v_mul_f32 v%d, v%d, v%d" % (t1, t1, t0))
                rb(t1, t1)
                E("v_fmac_f32 v%d, v%d, v%d" % (YA[c], t1, WF[2]))
    for c in range(3):
        wave_sum(YA[c], YA[c], 80)
    E("s_mul_i32 s8, s3, 12")
    E("v_mov_b32 v%d, s8" % t0)
    E("s_mov_b64 s[14:15], exec")
    E("s_mov_b64 exec, 1")
    for c in range(3):
        E("ds_write_b32 v%d, v%d offset:%d" % (t0, YA[c], YP + 4 * c))
    E("s_mov_b64 exec, s[14:15]")
    L("K1_NOB")
    E("s_waitcnt lgkmcnt(0)")
    stamp()
    for a in range(24):
        E("v_mov_b32 v%d, 0" % (ACC + a))
    for t in range(NWQ):
        tile = ("wq", t)
        vm.wait(tile)
        gemv_tile(RING + 12 * slot[tile], XNV + t, ACC, TMP[0], TMP[1])
        release(tile)
        issue_next()
    stamp()
    E("v_mul_u32_u24 v%d, 768, v7" % TMP[2])
    E("v_lshl_add_u32 v%d, v3, 5, v%d" % (TMP[2], TMP[2]))
    def red_write():
        for i in range(3):
            E("ds_write_b128 v%d, v[%d:%d] offset:%d" % (TMP[2], ACC + 8 * i, ACC + 8 * i + 3, RED + 256 * i))
            E("ds_write_b128 v%d, v[%d:%d] offset:%d" % (TMP[2], ACC + 8 * i + 4, ACC + 8 * i + 7, RED + 256 * i + 16))
    red_write()
    E("s_cmp_lg_u32 s3, 0")
    E("s_cbranch_scc1 K1_NON2")
    E("s_waitcnt vmcnt(%d)" % min(63, vm.total - nonce_mark))
    E("v_readfirstlane_b32 s99, v%d" % NV)
    E("s_cmp_eq_u32 s99, 0")
    E("s_cselect_b32 s99, s98, s99")
    E("v_mov_b32 v%d, s99" % NV)
    E("v_mov_b32 v%d, 0" % (NV + 1))
    E("ds_write_b32 v%d, v%d offset:%d" % (NV + 1, NV, YP + 256))
    L("K1_NON2")
    E("s_waitcnt lgkmcnt(0)")
    E("s_barrier")
    E("v_mov_b32 v%d, 0" % (NV + 1))
    E("ds_read_b32 v%d, v%d offset:%d" % (NV, NV + 1, YP + 256))
    E("s_waitcnt lgkmcnt(0)")
    E("v_readfirstlane_b32 s99, v%d" % NV)
    E("s_cmp_ge_u32 s3, 3")
    E("s_cbranch_scc1 K1_SKIPQ")
    regs = [ACC + g for g in range(24)] + [SC + g for g in range(8)]
    acc = TMP[0]
    for bt in range(NG // 32):
        for g in range(32):
            E("ds_read_b32 v%d, v9 offset:%d" % (regs[g], RED + 768 * (bt * 32 + g)))
        for g in range(32):
            E("s_waitcnt lgkmcnt(%d)" % min(15, 31 - g))
            if bt == 0 and g == 0:
                E("v_mov_b32 v%d, v%d" % (acc, regs[0]))
            else:
                E("v_add_f32 v%d, v%d, v%d" % (acc, acc, regs[g]))
    E("v_cvt_pk_bf16_f32 v%d, v%d, v%d" % (acc, acc, acc))
    E("v_lshlrev_b32 v%d, 1, v0" % TMP[1])
    E("ds_write_b16 v%d, v%d offset:%d" % (TMP[1], acc, QB))
    E("s_branch K1_SKIPB")
    L("K1_SKIPQ")
    E("s_cmp_lg_u32 s3, 3")
    E("s_cbranch_scc1 K1_SKIPB")
    Y = ACC
    for w in range(4):
        E("ds_read_b32 v%d, v8 offset:%d" % (Y + w, YP + 12 * w))
    E("s_waitcnt lgkmcnt(0)")
    y = Y
    for w in range(1, 4):
        E("v_add_f32 v%d, v%d, v%d" % (y, y, Y + w))
    rb(y, y)
    E("v_lshlrev_b32 v%d, 16, v%d" % (B2R, B2R))
    E("v_add_f32 v%d, v%d, v%d" % (y, y, B2R))
    rb(y, y)
    E("v_mul_f32 v%d, %s, v%d" % (Y + 1, fh(-LOG2E), y))
    E("v_exp_f32 v%d, v%d" % (Y + 1, Y + 1))
    E("s_nop 0")
    E("v_add_f32 v%d, 1.0, v%d" % (Y + 1, Y + 1))
    E("v_rcp_f32 v%d, v%d" % (Y + 1, Y + 1))
    E("s_nop 0")
    E("v_mul_f32 v%d, v%d, v%d" % (y, y, Y + 1))
    rb(y, y)
    E("s_cmp_lt_u32 s2, 128")
    E("s_cselect_b32 s8, 7, 3")
    E("s_mov_b32 s9, 0")
    E("s_mov_b64 s[14:15], exec")
    E("s_mov_b64 exec, s[8:9]")
    E("v_lshlrev_b32 v%d, 11, v1" % (Y + 2))
    E("s_lshl_b32 s8, s2, 3")
    E("s_add_u32 s8, s8, %d" % G_OFF)
    E("v_add_u32 v%d, s8, v%d" % (Y + 2, Y + 2))
    E("v_mov_b32 v%d, s99" % (Y + 1))
    E("buffer_store_dwordx2 v[%d:%d], v%d, s[%d:%d], 0 offen sc1" % (y, y + 1, Y + 2, sWS, sWS + 3))
    E("s_mov_b64 exec, s[14:15]")
    L("K1_SKIPB")
    E("s_waitcnt lgkmcnt(0)")
    E("s_barrier")
    E("v_lshlrev_b32 v%d, 4, v3" % TMP[0])
    for i in range(3):
        E("ds_read_b128 v[%d:%d], v%d offset:%d" % (QF + 4 * i, QF + 4 * i + 3, TMP[0], QB + 128 * i))
    E("s_waitcnt lgkmcnt(0)")
    stamp()
    scale = 192 ** -0.5
    for t in range(NKV):
        tile = ("k", t)
        vm.wait(tile)
        base = RING + 12 * slot[tile]
        a = TMP[0]
        E("v_dot2_f32_bf16 v%d, v%d, v%d, 0" % (a, base, QF))
        for k in range(1, 12):
            E("v_dot2_f32_bf16 v%d, v%d, v%d, v%d" % (a, base + k, QF + k, a))
        release(tile)
        if not issue_next():
            E("s_nop 2")
        E("v_add_f32_dpp v%d, v%d, v%d quad_perm:[1,0,3,2] row_mask:0xf bank_mask:0xf" % (a, a, a))
        E("s_nop 1")
        E("v_add_f32_dpp v%d, v%d, v%d quad_perm:[2,3,0,1] row_mask:0xf bank_mask:0xf" % (a, a, a))
        E("s_nop 1")
        E("v_add_f32_dpp v%d, v%d, v%d row_half_mirror row_mask:0xf bank_mask:0xf" % (a, a, a))
        rb(a, a)
        E("v_mul_f32 v%d, %s, v%d" % (a, fh(scale), a))
        rb(SC + t, a)
    stamp()
    vmx, vl = TMP[4], TMP[5]
    E("v_max_f32 v%d, v%d, v%d" % (vmx, SC, SC + 1))
    for t in range(2, NKV):
        E("v_max_f32 v%d, v%d, v%d" % (vmx, vmx, SC + t))
    for t in range(NKV):
        E("v_sub_f32 v%d, v%d, v%d" % (SC + t, SC + t, vmx))
        E("v_mul_f32 v%d, %s, v%d" % (SC + t, fh(LOG2E), SC + t))
        E("v_exp_f32 v%d, v%d" % (SC + t, SC + t))
    E("s_nop 0")
    E("v_add_f32 v%d, v%d, v%d" % (vl, SC, SC + 1))
    for t in range(2, NKV):
        E("v_add_f32 v%d, v%d, v%d" % (vl, vl, SC + t))
    for a in range(24):
        E("v_mov_b32 v%d, 0" % (ACC + a))
    for t in range(NKV):
        tile = ("v", t)
        vm.wait(tile)
        gemv_tile(RING + 12 * slot[tile], SC + t, ACC, TMP[0], TMP[1])
        release(tile)
        issue_next()
    stamp()
    red_write()
    E("v_lshlrev_b32 v%d, 3, v7" % TMP[0])
    E("ds_write_b64 v%d, v[%d:%d] offset:%d" % (TMP[0], vmx, vl, ML))
    E("s_waitcnt lgkmcnt(0)")
    E("s_barrier")
    E("s_cmp_ge_u32 s3, 3")
    E("s_cbranch_scc1 K1_PUB")
    AR = ACC
    MLV = TMP[4]
    E("v_lshlrev_b32 v%d, 3, v1" % TMP[0])
    E("v_and_b32 v%d, 0xff, v%d" % (TMP[0], TMP[0]))
    E("ds_read_b64 v[%d:%d], v%d offset:%d" % (MLV, MLV + 1, TMP[0], ML))
    for g in range(NG):
        E("ds_read_b32 v%d, v9 offset:%d" % (AR + g, RED + 768 * g))
    E("s_waitcnt lgkmcnt(15)")
    M, LS = TMP[6], TMP[7]
    wave_max(MLV, M, 80)
    E("v_sub_f32 v%d, v%d, v%d" % (MLV, MLV, M))
    E("v_mul_f32 v%d, %s, v%d" % (MLV, fh(LOG2E), MLV))
    E("v_exp_f32 v%d, v%d" % (MLV, MLV))
    E("s_nop 0")
    E("v_mul_f32 v%d, v%d, v%d" % (MLV + 1, MLV, MLV + 1))
    wave_sum(MLV + 1, LS, 80)
    E("v_mul_f32 v%d, 0.5, v%d" % (LS, LS))
    O = TMP[1]
    E("v_mov_b32 v%d, 0" % O)
    E("s_waitcnt lgkmcnt(0)")
    for g0 in range(0, NG, 4):
        for i in range(4):
            E("v_readlane_b32 s%d, v%d, %d" % (80 + i, MLV, g0 + i))
        E("s_nop 0")
        for i in range(4):
            E("v_fmac_f32 v%d, s%d, v%d" % (O, 80 + i, AR + g0 + i))
    E("v_mov_b32 v%d, v%d" % (TMP[0], O))
    E("v_mov_b32 v%d, s99" % TMP[1])
    E("s_lshl_b32 s8, s4, 3")
    E("s_add_u32 s8, s8, s13")
    E("s_lshl_b32 s8, s8, 11")
    E("v_lshl_add_u32 v%d, v0, 3, s8" % TMP[2])
    E("buffer_store_dwordx2 v[%d:%d], v%d, s[%d:%d], 0 offen sc1" % (TMP[0], TMP[1], TMP[2], sWS, sWS + 3))
    E("v_mov_b32 v%d, v%d" % (TMP[4], M))
    E("v_mov_b32 v%d, s99" % TMP[5])
    E("v_mov_b32 v%d, v%d" % (TMP[6], LS))
    E("v_mov_b32 v%d, s99" % TMP[7])
    E("v_mov_b32 v%d, s8" % TMP[3])
    E("s_cmp_lg_u32 s3, 0")
    E("s_cbranch_scc1 K1_NOML")
    E("s_mov_b64 exec, 1")
    E("buffer_store_dwordx4 v[%d:%d], v%d, s[%d:%d], 0 offen offset:1536 sc1" % (TMP[4], TMP[7], TMP[3], sWS, sWS + 3))
    E("s_mov_b64 exec, -1")
    L("K1_NOML")
    stamp()
    OP = ACC
    MLP = ACC + 16
    E("s_lshl_b32 s8, s4, 14")
    E("v_lshl_add_u32 v%d, v0, 3, s8" % TMP[0])
    E("v_mov_b32 v%d, s8" % TMP[1])
    E("s_mov_b32 s9, 0")
    L("K1_POLL")
    for sp in range(8):
        E("s_mov_b32 s10, %d" % (sp * 2048))
        E("buffer_load_dwordx4 v[%d:%d], v%d, s[%d:%d], s10 offen offset:1536 sc1" % (MLP + 4 * sp, MLP + 4 * sp + 3, TMP[1], sWS, sWS + 3))
        E("buffer_load_dwordx2 v[%d:%d], v%d, s[%d:%d], s10 offen sc1" % (OP + 2 * sp, OP + 2 * sp + 1, TMP[0], sWS, sWS + 3))
    E("s_waitcnt vmcnt(0)")
    E("v_xor_b32 v%d, s99, v%d" % (TMP[2], OP + 1))
    for sp in range(8):
        for r_ in ([OP + 2 * sp + 1] if sp else []) + [MLP + 4 * sp + 1, MLP + 4 * sp + 3]:
            E("v_xor_b32 v%d, s99, v%d" % (TMP[3], r_))
            E("v_or_b32 v%d, v%d, v%d" % (TMP[2], TMP[2], TMP[3]))
    E("v_cmp_ne_u32 vcc, 0, v%d" % TMP[2])
    E("s_add_u32 s9, s9, 1")
    E("s_cmp_ge_u32 s9, 0x40000")
    E("s_cbranch_scc1 K1_POLLED")
    E("s_cbranch_vccz K1_POLLED")
    E("s_sleep 1")
    E("s_branch K1_POLL")
    L("K1_POLLED")
    stamp()
    M, O, LS, T = TMP[2], TMP[3], TMP[4], TMP[5]
    E("v_max_f32 v%d, v%d, v%d" % (M, MLP, MLP + 4))
    for sp in range(2, 8):
        E("v_max_f32 v%d, v%d, v%d" % (M, M, MLP + 4 * sp))
    E("v_mov_b32 v%d, 0" % O)
    E("v_mov_b32 v%d, 0" % LS)
    for sp in range(8):
        E("v_sub_f32 v%d, v%d, v%d" % (MLP + 4 * sp, MLP + 4 * sp, M))
        E("v_mul_f32 v%d, %s, v%d" % (MLP + 4 * sp, fh(LOG2E), MLP + 4 * sp))
        E("v_exp_f32 v%d, v%d" % (MLP + 4 * sp, MLP + 4 * sp))
    E("s_nop 0")
    for sp in range(8):
        E("v_fmac_f32 v%d, v%d, v%d" % (O, MLP + 4 * sp, OP + 2 * sp))
        E("v_fmac_f32 v%d, v%d, v%d" % (LS, MLP + 4 * sp, MLP + 4 * sp + 2))
    E("v_rcp_f32 v%d, v%d" % (T, LS))
    E("s_nop 0")
    E("v_mul_f32 v%d, v%d, v%d" % (M, O, T))
    E("v_fma_f32 v%d, -v%d, v%d, v%d" % (O, M, LS, O))
    E("v_fma_f32 v%d, v%d, v%d, v%d" % (M, O, T, M))
    rb(M, M)
    OL = XN
    R2 = RED + 8192 * 2
    E("ds_write_b32 v9, v%d offset:%d" % (M, OL))
    L("K1_PUB")
    vm.drain()
    E("s_waitcnt lgkmcnt(0)")
    E("s_barrier")
    E("v_mul_u32_u24 v%d, 205, v0" % TMP[0])
    E("v_lshrrev_b32 v%d, 11, v%d" % (TMP[0], TMP[0]))
    E("v_mul_u32_u24 v%d, 10, v%d" % (TMP[1], TMP[0]))
    E("v_sub_u32 v%d, v0, v%d" % (TMP[1], TMP[1]))
    E("v_lshlrev_b32 v%d, 2, v%d" % (TMP[2], TMP[0]))
    OV = ACC
    for p in range(8):
        E("ds_read_b32 v%d, v%d offset:%d" % (OV + p, TMP[2], OL + 96 * p))
    AC = ACC + 8
    for a in range(8):
        E("v_mov_b32 v%d, 0" % (AC + a))
    E("s_waitcnt lgkmcnt(0)")
    for p in range(8):
        base = RING + 12 * slot[("wo", p // 3)] + 4 * (p % 3)
        for k in range(4):
            E("v_lshlrev_b32 v%d, 16, v%d" % (TMP[3], base + k))
            E("v_and_b32 v%d, 0xffff0000, v%d" % (TMP[4], base + k))
            E("v_fmac_f32 v%d, v%d, v%d" % (AC + 2 * k, OV + p, TMP[3]))
            E("v_fmac_f32 v%d, v%d, v%d" % (AC + 2 * k + 1, OV + p, TMP[4]))
    E("v_mul_u32_u24 v%d, 320, v%d" % (TMP[2], TMP[0]))
    E("v_lshl_add_u32 v%d, v%d, 5, v%d" % (TMP[2], TMP[1], TMP[2]))
    E("ds_write_b128 v%d, v[%d:%d] offset:%d" % (TMP[2], AC, AC + 3, R2))
    E("ds_write_b128 v%d, v[%d:%d] offset:%d" % (TMP[2], AC + 4, AC + 7, R2 + 16))
    E("s_waitcnt lgkmcnt(0)")
    E("s_barrier")
    E("s_cmp_lg_u32 s3, 0")
    E("s_cbranch_scc1 K1_END")
    E("s_mov_b32 s8, -1")
    E("s_mov_b32 s9, 0xff")
    E("s_mov_b64 exec, s[8:9]")
    E("v_lshlrev_b32 v%d, 3, v1" % TMP[0])
    RR = RING
    for g in range(24):
        E("ds_read_b64 v[%d:%d], v%d offset:%d" % (RR + 2 * g, RR + 2 * g + 1, TMP[0], R2 + 320 * g))
    E("s_waitcnt lgkmcnt(0)")
    for g in range(1, 24):
        E("v_add_f32 v%d, v%d, v%d" % (RR, RR, RR + 2 * g))
        E("v_add_f32 v%d, v%d, v%d" % (RR + 1, RR + 1, RR + 2 * g + 1))
    E("v_mov_b32 v%d, v%d" % (RR + 2, RR + 1))
    E("v_mov_b32 v%d, s99" % (RR + 1))
    E("v_mov_b32 v%d, s99" % (RR + 3))
    E("s_lshl_b32 s8, s13, 5")
    E("s_add_u32 s8, s8, s4")
    E("s_lshl_b32 s8, s8, 10")
    E("s_add_u32 s8, s8, %d" % SP_OFF)
    E("v_lshl_add_u32 v%d, v1, 4, s8" % TMP[1])
    E("buffer_store_dwordx4 v[%d:%d], v%d, s[%d:%d], 0 offen sc1" % (RR, RR + 3, TMP[1], sWS, sWS + 3))
    E("s_cmp_lg_u32 s4, 0")
    E("s_cbranch_scc1 K1_FIN")
    E("s_lshl_b32 s8, s13, 15")
    E("s_add_u32 s8, s8, %d" % SP_OFF)
    E("v_lshl_add_u32 v%d, v1, 4, s8" % TMP[1])
    E("s_mul_i32 s8, s13, 640")
    E("s_add_u32 s8, s8, %d" % G_OFF)
    E("v_lshl_add_u32 v%d, v1, 4, s8" % TMP[3])
    E("s_mul_i32 s8, s13, 160")
    E("v_lshlrev_b32 v%d, 2, v1" % TMP[2])
    E("v_add_u32 v%d, s8, v%d" % (TMP[2], TMP[2]))
    XV = TMP[8]
    GV = TMP[4]
    E("buffer_load_dword v%d, v%d, s[%d:%d], 0 offen" % (XV, TMP[2], sX, sX + 3))
    E("s_mov_b32 s9, 0")
    L("K1_POLL2")
    for g in range(32):
        E("s_mov_b32 s10, %d" % (g * 1024))
        E("buffer_load_dwordx4 v[%d:%d], v%d, s[%d:%d], s10 offen sc1" % (RR + 4 * g, RR + 4 * g + 3, TMP[1], sWS, sWS + 3))
    E("buffer_load_dwordx4 v[%d:%d], v%d, s[%d:%d], 0 offen sc1" % (GV, GV + 3, TMP[3], sWS, sWS + 3))
    E("s_waitcnt vmcnt(0)")
    E("v_xor_b32 v%d, s99, v%d" % (ACC, GV + 1))
    for r_ in [GV + 3] + [RR + 4 * g + e for g in range(32) for e in (1, 3)]:
        E("v_xor_b32 v%d, s99, v%d" % (ACC + 1, r_))
        E("v_or_b32 v%d, v%d, v%d" % (ACC, ACC, ACC + 1))
    E("v_cmp_ne_u32 vcc, 0, v%d" % ACC)
    E("s_add_u32 s9, s9, 1")
    E("s_cmp_ge_u32 s9, 0x40000")
    E("s_cbranch_scc1 K1_POLLED2")
    E("s_cbranch_vccz K1_POLLED2")
    E("s_sleep 1")
    E("s_branch K1_POLL2")
    L("K1_POLLED2")
    for g in range(1, 32):
        E("v_add_f32 v%d, v%d, v%d" % (RR, RR, RR + 4 * g))
        E("v_add_f32 v%d, v%d, v%d" % (RR + 2, RR + 2, RR + 4 * g + 2))
    E("v_and_b32 v%d, 0xffff0000, v%d" % (XV + 1, XV))
    E("v_lshlrev_b32 v%d, 16, v%d" % (XV, XV))
    for e in range(2):
        rb(RR + 2 * e, RR + 2 * e)
        E("v_mul_f32 v%d, v%d, v%d" % (RR + 2 * e, RR + 2 * e, GV + 2 * e))
        rb(RR + 2 * e, RR + 2 * e)
        E("v_add_f32 v%d, v%d, v%d" % (RR + 2 * e, RR + 2 * e, XV + e))
    E("v_cvt_pk_bf16_f32 v%d, v%d, v%d" % (RR, RR, RR + 2))
    E("buffer_store_dword v%d, v%d, s[%d:%d], 0 offen" % (RR, TMP[2], sOUT, sOUT + 3))
    L("K1_FIN")
    E("s_mov_b64 exec, -1")
    stamp()
    stamp_flush()
    L("K1_END")
    E("s_endpgm")

def kernel2():
    vm = VM()
    L(NAME + "_k2_kernel")
    E("s_cmp_ge_u32 s2, 320")
    E("s_cbranch_scc1 K2_END")
    if os.environ.get("OST"): E("s_memrealtime s[90:91]")
    E("s_load_dwordx16 s[16:31], s[0:1], 0")
    E("s_load_dwordx8 s[32:39], s[0:1], 64")
    E("s_load_dwordx2 s[40:41], s[0:1], 96")
    E("s_mov_b32 s5, 429496730")
    E("s_mul_hi_u32 s4, s2, s5")
    E("s_mul_i32 s5, s4, 10")
    E("s_sub_u32 s5, s2, s5")
    E("v_lshrrev_b32 v4, 6, v0")
    E("s_nop 0")
    E("v_readfirstlane_b32 s3, v4")
    E("v_lshrrev_b32 v2, 3, v0")
    E("v_and_b32 v3, 7, v0")
    E("v_lshlrev_b32 v9, 2, v0")
    E("s_waitcnt lgkmcnt(0)")
    sX, sWO, sOUT, sDBG, sWS = 44, 48, 52, 56, 60
    srd(sX, 16, 1280)
    srd(sWO, 24, 7864320)
    srd(sOUT, 36, 1280)
    srd(sDBG, 38, 256)
    srd(sWS, 40, WS_BYTES)
    E("s_lshl_b32 s8, s4, 13")
    E("v_add_u32 v5, s8, v9")
    E("v_mov_b32 v6, s8")
    OP = 10
    MLP = 18
    for s in range(8):
        E("buffer_load_dwordx2 v[%d:%d], v6, s[%d:%d], 0 offen offset:%d" % (MLP + 2 * s, MLP + 2 * s + 1, sWS, sWS + 3, 768))
        vm.issue("ml")
        E("buffer_load_dword v%d, v5, s[%d:%d], 0 offen" % (OP + s, sWS, sWS + 3))
        vm.issue("op")
        if s < 7:
            E("v_add_u32 v5, 1024, v5")
            E("v_add_u32 v6, 1024, v6")
    E("s_mul_i32 s8, s4, 192")
    E("v_add_u32 v7, s8, v2")
    E("v_mul_u32_u24 v7, 1280, v7")
    E("v_lshl_add_u32 v7, v3, 4, v7")
    E("s_lshl_b32 s8, s5, 7")
    E("v_add_u32 v7, s8, v7")
    WOR = 40
    for p in range(6):
        E("s_mov_b32 s10, %d" % (p * 40960))
        E("buffer_load_dwordx4 v[%d:%d], v7, s[%d:%d], s10 offen nt" % (WOR + 4 * p, WOR + 4 * p + 3, sWO, sWO + 3))
        vm.issue("wo%d" % p)
    vm.wait("op")
    M, O, LS, T = 34, 35, 36, 37
    E("v_max_f32 v%d, v%d, v%d" % (M, MLP, MLP + 2))
    for s in range(2, 8):
        E("v_max_f32 v%d, v%d, v%d" % (M, M, MLP + 2 * s))
    E("v_mov_b32 v%d, 0" % O)
    E("v_mov_b32 v%d, 0" % LS)
    for s in range(8):
        E("v_sub_f32 v%d, v%d, v%d" % (MLP + 2 * s, MLP + 2 * s, M))
        E("v_mul_f32 v%d, %s, v%d" % (MLP + 2 * s, fh(LOG2E), MLP + 2 * s))
        E("v_exp_f32 v%d, v%d" % (MLP + 2 * s, MLP + 2 * s))
    E("s_nop 0")
    for s in range(8):
        E("v_fmac_f32 v%d, v%d, v%d" % (O, MLP + 2 * s, OP + s))
        E("v_fmac_f32 v%d, v%d, v%d" % (LS, MLP + 2 * s, MLP + 2 * s + 1))
    E("v_rcp_f32 v%d, v%d" % (T, LS))
    E("s_nop 0")
    E("v_mul_f32 v%d, v%d, v%d" % (M, O, T))
    E("v_fma_f32 v%d, -v%d, v%d, v%d" % (O, M, LS, O))
    E("v_fma_f32 v%d, v%d, v%d, v%d" % (M, O, T, M))
    rb(M, M)
    E("ds_write_b32 v9, v%d" % M)
    E("s_waitcnt lgkmcnt(0)")
    E("s_barrier")
    E("v_lshlrev_b32 v8, 2, v2")
    OV = 10
    for p in range(6):
        E("ds_read_b32 v%d, v8 offset:%d" % (OV + p, 128 * p))
    AC = 20
    for a in range(8):
        E("v_mov_b32 v%d, 0" % (AC + a))
    E("s_waitcnt lgkmcnt(0)")
    for p in range(6):
        vm.wait("wo%d" % p)
        for k in range(4):
            E("v_lshlrev_b32 v%d, 16, v%d" % (T, WOR + 4 * p + k))
            E("v_and_b32 v%d, 0xffff0000, v%d" % (T + 1, WOR + 4 * p + k))
            E("v_fmac_f32 v%d, v%d, v%d" % (AC + 2 * k, OV + p, T))
            E("v_fmac_f32 v%d, v%d, v%d" % (AC + 2 * k + 1, OV + p, T + 1))
    E("v_lshlrev_b32 v8, 8, v2")
    E("v_lshl_add_u32 v8, v3, 5, v8")
    E("ds_write_b128 v8, v[%d:%d] offset:1024" % (AC, AC + 3))
    E("ds_write_b128 v8, v[%d:%d] offset:1040" % (AC + 4, AC + 7))
    E("s_waitcnt lgkmcnt(0)")
    E("s_barrier")
    E("s_cmp_lg_u32 s3, 0")
    E("s_cbranch_scc1 K2_END")
    RR = 64
    for g in range(32):
        E("ds_read_b32 v%d, v9 offset:%d" % (RR + g, 1024 + 256 * g))
    E("s_waitcnt lgkmcnt(0)")
    for g in range(1, 32):
        E("v_add_f32 v%d, v%d, v%d" % (RR, RR, RR + g))
    E("s_lshl_b32 s8, s5, 5")
    E("s_add_u32 s8, s8, s4")
    E("s_lshl_b32 s8, s8, 8")
    E("s_add_u32 s8, s8, %d" % SP_OFF)
    E("v_add_u32 v8, s8, v9")
    E("buffer_store_dword v%d, v8, s[%d:%d], 0 offen sc1" % (RR, sWS, sWS + 3))
    E("s_waitcnt vmcnt(0)")
    E("s_lshl_b32 s8, s5, 2")
    E("v_mov_b32 v8, s8")
    E("v_mov_b32 v10, 1")
    E("s_mov_b64 s[14:15], exec")
    E("s_mov_b64 exec, 1")
    E("buffer_atomic_add v10, v8, s[%d:%d], 0 offen sc0" % (sDBG, sDBG + 3))
    E("s_waitcnt vmcnt(0)")
    E("s_mov_b64 exec, s[14:15]")
    E("v_readfirstlane_b32 s8, v10")
    E("s_cmp_lg_u32 s8, 31")
    E("s_cbranch_scc1 K2_END")
    E("s_lshl_b32 s8, s5, 13")
    E("s_add_u32 s8, s8, %d" % SP_OFF)
    E("v_add_u32 v8, s8, v9")
    for g in range(32):
        if g % 16 == 0 and g:
            E("v_add_u32 v8, 4096, v8")
        E("buffer_load_dword v%d, v8, s[%d:%d], 0 offen offset:%d sc1" % (RR + g, sWS, sWS + 3, 256 * (g % 16)))
    E("s_lshl_b32 s8, s5, 8")
    E("s_add_u32 s9, s8, %d" % G_OFF)
    E("v_add_u32 v10, s9, v9")
    E("buffer_load_dword v11, v10, s[%d:%d], 0 offen" % (sWS, sWS + 3))
    E("s_lshl_b32 s8, s5, 7")
    E("v_lshlrev_b32 v12, 1, v0")
    E("v_add_u32 v12, s8, v12")
    E("buffer_load_ushort v13, v12, s[%d:%d], 0 offen" % (sX, sX + 3))
    E("s_waitcnt vmcnt(0)")
    for g in range(1, 32):
        E("v_add_f32 v%d, v%d, v%d" % (RR, RR, RR + g))
    rb(RR, RR)
    E("v_mul_f32 v%d, v%d, v11" % (RR, RR))
    rb(RR, RR)
    E("v_lshlrev_b32 v13, 16, v13")
    E("v_add_f32 v%d, v%d, v13" % (RR, RR))
    E("v_cvt_pk_bf16_f32 v%d, v%d, v%d" % (RR, RR, RR))
    E("buffer_store_short v%d, v12, s[%d:%d], 0 offen" % (RR, sOUT, sOUT + 3))
    if os.environ.get("OST"):
        E("s_cmp_lg_u32 s5, 0"); E("s_cbranch_scc1 K2_END")
        E("s_memrealtime s[92:93]")
        E("v_mov_b32 v2, 0x100000")
        E("buffer_load_dwordx4 v[20:23], v2, s[60:63], 0 offen")
        E("buffer_load_dwordx4 v[24:27], v2, s[60:63], 0 offen offset:16")
        E("s_waitcnt vmcnt(0) lgkmcnt(0)")
        E("v_sub_u32 v30, v21, v20")
        E("v_sub_u32 v31, v24, v20")
        E("v_sub_u32 v32, v26, v20")
        E("v_sub_u32 v33, v27, v20")
        E("v_sub_u32 v34, s90, v20")
        E("v_sub_u32 v35, s92, v20")
        E("v_mov_b32 v2, 40")
        E("s_mov_b64 exec, 1")
        E("buffer_store_dwordx4 v[30:33], v2, s[56:59], 0 offen")
        E("buffer_store_dwordx2 v[34:35], v2, s[56:59], 0 offen offset:16")
    L("K2_END")
    E("s_endpgm")

hdr = open("cdna_kernels/%s.s.ref" % NAME).read().split("\n")
head = [l for l in hdr if l.startswith(";") and "@launch" not in l and "Override launch" not in l and "grid=ceil" not in l]
head = head[:15]
src = "\n".join(head) + "\n"
src += "; @launch grid=(256,1,1) block=(256,1,1) lds=%d\n" % LDS1
src += '.amdgcn_target "amdgcn-amd-amdhsa--gfx950"\n.text\n'
kn = NAME + "_kernel"
out.clear()
kernel1()
src += ".globl %s\n.p2align 8\n.type %s,@function\n" % (kn, kn) + "\n".join(out) + "\n"
src += '.section .rodata,"a"\n'
src += """.p2align 6
.amdhsa_kernel %s
  .amdhsa_next_free_vgpr 256
  .amdhsa_next_free_sgpr 102
  .amdhsa_accum_offset 256
  .amdhsa_group_segment_fixed_size 0
  .amdhsa_kernarg_size 104
  .amdhsa_user_sgpr_count 2
  .amdhsa_user_sgpr_kernarg_segment_ptr 1
  .amdhsa_system_sgpr_workgroup_id_x 1
.end_amdhsa_kernel
""" % kn
open(sys.argv[1] if len(sys.argv) > 1 else "cdna_kernels/%s.s" % NAME, "w").write(src)
```

```python
import struct, sys
NAME = "recurrent_scan__sliding_block_cached__mixer_token_mlp__decode"
R = int(__import__('os').environ.get('R', '13'))

def f2u(x):
    return struct.unpack("<I", struct.pack("<f", x))[0]
def fh(x):
    return "0x%08x" % f2u(x)

LOG2E = 1.4426950408889634
out = []
def E(s):
    out.append("    " + s)
def L(s):
    out.append(s + ":")

class VM:
    def __init__(self):
        self.q = []
        self.total = 0
    def issue(self, tag):
        self.q.append(tag)
        self.total += 1
    def wait(self, tag):
        if tag not in self.q:
            return
        i = len(self.q) - 1 - self.q[::-1].index(tag)
        n = len(self.q) - 1 - i
        assert n <= 63
        E("s_waitcnt vmcnt(%d)" % n)
        self.q = self.q[i + 1:]
    def drain(self):
        E("s_waitcnt vmcnt(0)")
        self.q = []

def srd(d, p, nbytes):
    E("s_mov_b32 s%d, s%d" % (d, p))
    E("s_and_b32 s%d, s%d, 0xffff" % (d + 1, p + 1))
    E("s_mov_b32 s%d, 0x%x" % (d + 2, nbytes))
    E("s_mov_b32 s%d, 0x00020000" % (d + 3))

def rb(vd, vs):
    E("v_cvt_pk_bf16_f32 v%d, v%d, v%d" % (vd, vs, vs))
    E("v_lshlrev_b32 v%d, 16, v%d" % (vd, vd))

def wave_sum(vin, vt, sa):
    E("s_nop 1")
    E("v_add_f32_dpp v%d, v%d, v%d quad_perm:[1,0,3,2] row_mask:0xf bank_mask:0xf" % (vt, vin, vin))
    E("s_nop 1")
    E("v_add_f32_dpp v%d, v%d, v%d quad_perm:[2,3,0,1] row_mask:0xf bank_mask:0xf" % (vt, vt, vt))
    E("s_nop 1")
    E("v_add_f32_dpp v%d, v%d, v%d row_half_mirror row_mask:0xf bank_mask:0xf" % (vt, vt, vt))
    E("s_nop 1")
    E("v_add_f32_dpp v%d, v%d, v%d row_mirror row_mask:0xf bank_mask:0xf" % (vt, vt, vt))
    E("s_nop 1")
    for i in range(4):
        E("v_readlane_b32 s%d, v%d, %d" % (sa + i, vt, 16 * i))
    E("s_nop 1")
    E("v_mov_b32 v%d, s%d" % (vt, sa))
    for i in range(1, 4):
        E("v_add_f32 v%d, s%d, v%d" % (vt, sa + i, vt))

WS_BYTES = 1610612736
PART_OFF = 0
G_OFF = 524288
SP_OFF = 524288 + 8192

XN = 0
HH = 10240
RED = 20480
QB = 45056
ML = 45440
YP = 45696
LDS1 = 46080

def layernorm(xs, tmp, sa, outregs):
    t0, t1, t2, t3, t4, t5 = tmp[:6]
    E("v_add_f32 v%d, v%d, v%d" % (t0, xs[0], xs[1]))
    for i in range(2, 10):
        E("v_add_f32 v%d, v%d, v%d" % (t0, t0, xs[i]))
    wave_sum(t0, t1, sa)
    E("v_mul_f32 v%d, %s, v%d" % (t1, fh(1.0 / 640), t1))
    E("v_sub_f32 v%d, v%d, v%d" % (t2, xs[0], t1))
    E("v_mul_f32 v%d, v%d, v%d" % (t0, t2, t2))
    for i in range(1, 10):
        E("v_sub_f32 v%d, v%d, v%d" % (t2, xs[i], t1))
        E("v_fmac_f32 v%d, v%d, v%d" % (t0, t2, t2))
    wave_sum(t0, t2, sa)
    E("v_mul_f32 v%d, %s, v%d" % (t2, fh(1.0 / 640), t2))
    rb(t1, t1)
    rb(t2, t2)
    E("v_add_f32 v%d, %s, v%d" % (t2, fh(1e-5), t2))
    rb(t2, t2)
    E("v_sqrt_f32 v%d, v%d" % (t2, t2))
    E("s_nop 0")
    rb(t2, t2)
    E("v_rcp_f32 v%d, v%d" % (t3, t2))
    E("s_nop 0")
    for i in range(10):
        E("v_sub_f32 v%d, v%d, v%d" % (t4, xs[i], t1))
        rb(t4, t4)
        E("v_mul_f32 v%d, v%d, v%d" % (t5, t4, t3))
        E("v_fma_f32 v%d, -v%d, v%d, v%d" % (t4, t5, t2, t4))
        E("v_fma_f32 v%d, v%d, v%d, v%d" % (t5, t4, t3, t5))
        rb(outregs[i], t5)

def gemv_tile(base, vp, acc, t0, t1):
    for k in range(12):
        a = acc + (k // 4) * 8 + (k % 4) * 2
        E("v_lshlrev_b32 v%d, 16, v%d" % (t0, base + k))
        E("v_and_b32 v%d, 0xffff0000, v%d" % (t1, base + k))
        E("v_fmac_f32 v%d, v%d, v%d" % (a, vp, t0))
        E("v_fmac_f32 v%d, v%d, v%d" % (a + 1, vp, t1))

import os
STAMP = os.environ.get("STAMP")
stamp_i = [0]
def sreg(i):
    return 96 if i == 0 else 14 + 2 * i
def stamp():
    if not STAMP: return
    i = stamp_i[0]; stamp_i[0] += 1
    assert i <= 10
    E("s_memrealtime s[%d:%d]" % (sreg(i), sreg(i) + 1))
def stamp_flush():
    if not STAMP: return
    n = stamp_i[0]
    E("s_waitcnt lgkmcnt(0)")
    E("s_cmp_lg_u32 s3, 0"); E("s_cbranch_scc1 K1_NOST")
    E("s_lshl_b32 s8, s2, 6"); E("s_add_u32 s8, s8, 0x100000")
    E("s_mov_b64 exec, 1")
    for i in range(n):
        E("v_mov_b32 v1, s%d" % sreg(i))
        E("v_mov_b32 v2, s8")
        E("buffer_store_dword v1, v2, s[76:79], 0 offen offset:%d" % (4 * i))
    L("K1_NOST")

def wave_max(vin, vt, sa):
    E("s_nop 1")
    E("v_max_f32_dpp v%d, v%d, v%d quad_perm:[1,0,3,2] row_mask:0xf bank_mask:0xf" % (vt, vin, vin))
    E("s_nop 1")
    E("v_max_f32_dpp v%d, v%d, v%d quad_perm:[2,3,0,1] row_mask:0xf bank_mask:0xf" % (vt, vt, vt))
    E("s_nop 1")
    E("v_max_f32_dpp v%d, v%d, v%d row_half_mirror row_mask:0xf bank_mask:0xf" % (vt, vt, vt))
    E("s_nop 1")
    E("v_max_f32_dpp v%d, v%d, v%d row_mirror row_mask:0xf bank_mask:0xf" % (vt, vt, vt))
    E("s_nop 1")
    for i in range(4):
        E("v_readlane_b32 s%d, v%d, %d" % (sa + i, vt, 16 * i))
    E("s_nop 1")
    E("v_mov_b32 v%d, s%d" % (vt, sa))
    for i in range(1, 4):
        E("v_max_f32 v%d, s%d, v%d" % (vt, sa + i, vt))

NW = int(os.environ.get('NW', '4'))
NG = NW * 8
NWQ = 640 // NG
NKV = 512 // NG
RED = 0
QB = RED + NG * 768
ML = QB + 384
YP = ML + NG * 8
XN = YP + 512
HHB = XN + NW * 2560
HH = 0
LDS1 = HHB + NW * 2560

def kernel1():
    vm = VM()
    L(NAME + "_kernel")
    E("s_cmp_ge_u32 s2, 256")
    E("s_cbranch_scc1 K1_END")
    E("s_load_dwordx16 s[16:31], s[0:1], 0")
    E("s_load_dwordx8 s[32:39], s[0:1], 64")
    E("s_load_dwordx2 s[40:41], s[0:1], 96")
    E("v_and_b32 v1, 63, v0")
    E("v_lshrrev_b32 v2, 3, v1")
    E("v_and_b32 v3, 7, v1")
    E("v_lshrrev_b32 v4, 6, v0")
    E("s_nop 0")
    E("v_readfirstlane_b32 s3, v4")
    E("s_and_b32 s4, s2, 7")
    E("s_lshr_b32 s5, s2, 3")
    E("s_and_b32 s6, s5, 3")
    E("s_lshl_b32 s4, s4, 2")
    E("s_add_u32 s4, s4, s6")
    E("s_lshr_b32 s5, s5, 2")
    E("s_waitcnt lgkmcnt(0)")
    stamp()
    sX, sK, sV, sWQ, sW1, sB1, sW2, sB2, sWS = 44, 48, 52, 56, 60, 64, 68, 72, 76
    srd(sX, 16, 1280)
    srd(sK, 18, 402653184)
    srd(sV, 20, 402653184)
    srd(sWQ, 22, 7864320)
    srd(sW1, 28, 3072)
    srd(sB1, 30, 3072)
    srd(sW2, 32, 3072)
    srd(sB2, 34, 2)
    srd(sWS, 40, WS_BYTES)
    E("s_mov_b32 s13, s5")
    E("s_mul_i32 s7, s4, 12582912")
    KMAP = os.environ.get("KMAP", "chunk")
    if KMAP == "chunk":
        E("s_lshl_b32 s8, s5, 9")
        E("s_mul_i32 s9, s3, %d" % (NKV * 8))
        TSTR = 3072
    elif KMAP == "inter":
        E("s_lshl_b32 s8, s5, 3")
        E("s_lshl_b32 s9, s3, 6")
        TSTR = 3072 * 8 * NW
    else:
        E("s_lshl_b32 s8, s5, 9")
        E("s_lshl_b32 s9, s3, 3")
        TSTR = 3072 * NW
    E("s_add_u32 s8, s8, s9")
    E("s_add_u32 s8, s8, 28672")
    E("s_mul_i32 s8, s8, 384")
    E("s_add_u32 s7, s7, s8")
    E("v_mul_u32_u24 v5, 384, v2")
    E("v_lshl_add_u32 v5, v3, 4, v5")
    E("v_add_u32 v5, s7, v5")
    E("s_lshl_b32 s8, s3, 3")
    E("v_add_u32 v6, s8, v2")
    E("v_mov_b32 v7, v6")
    E("v_mul_u32_u24 v6, 12288, v6")
    E("v_lshl_add_u32 v6, v3, 4, v6")
    E("s_mul_i32 s8, s4, 384")
    E("v_add_u32 v6, s8, v6")
    E("v_lshlrev_b32 v8, 2, v1")
    E("v_lshlrev_b32 v9, 2, v0")
    ACC = 10
    QF = 34
    SC = 46
    XNV = SC + NKV
    T0 = XNV + NWQ
    T0 += T0 & 1
    TMP = list(range(T0, T0 + 10))
    B2R = T0 + 10
    VWO = T0 + 11
    RING = 256 - 12 * R
    assert RING >= T0 + 14
    XR = 10
    W1R, B1R, W2R = 15, 18, 21
    XS = list(range(24, 34))
    HS = list(range(34, 44))
    for i in range(5):
        E("buffer_load_dword v%d, v8, s[%d:%d], 0 offen offset:%d" % (XR + i, sX, sX + 3, 256 * i))
        vm.issue("x%d" % i)
    E("v_and_b32 v%d, 0x3ff, v9" % TMP[0])
    for i in range(3):
        E("buffer_load_dword v%d, v%d, s[%d:%d], 0 offen offset:%d" % (W1R + i, TMP[0], sW1, sW1 + 3, 1024 * i)); vm.issue("w1")
        E("buffer_load_dword v%d, v%d, s[%d:%d], 0 offen offset:%d" % (B1R + i, TMP[0], sB1, sB1 + 3, 1024 * i)); vm.issue("b1")
        E("buffer_load_dword v%d, v%d, s[%d:%d], 0 offen offset:%d" % (W2R + i, TMP[0], sW2, sW2 + 3, 1024 * i)); vm.issue("w2")
    E("v_mov_b32 v%d, 0" % TMP[1])
    E("buffer_load_ushort v%d, v%d, s[%d:%d], 0 offen" % (B2R, TMP[1], sB2, sB2 + 3)); vm.issue("b2")
    assert RING + 12 * R <= 256
    wq = [("wq", t) for t in range(NWQ)]
    kv = [("k", t) for t in range(NKV)] + [("v", t) for t in range(NKV)]
    RPP = 6 * NW
    NPASS = 192 // RPP
    qa, qb = list(wq), list(kv) + [("wo", i) for i in range((NPASS + 2) // 3)]
    WQS = int(os.environ.get("WQS", "4"))
    state = {"held": 0, "last": "kv"}
    def pick():
        if qa and (not qb or state["held"] >= R - WQS or state["last"] == "kv"):
            state["last"] = "wq"
            return qa.pop(0)
        if qb:
            state["last"] = "kv"
            state["held"] += 1
            return qb.pop(0)
        return None
    sWO, sDBG, sOUT = 84, 88, 92
    free = list(range(R))
    slot = {}
    def issue_next():
        if not free:
            return False
        tile = pick()
        if tile is None:
            return False
        kind, t = tile
        sl = free.pop(0)
        slot[tile] = sl
        base = RING + 12 * sl
        if kind == "wo":
            for i in range(3):
                p = t * 3 + i
                if p < NPASS:
                    E("s_mov_b32 s10, %d" % (p * RPP * 1280))
                    E("buffer_load_dwordx4 v[%d:%d], v%d, s[%d:%d], s10 offen nt" % (base + 4 * i, base + 4 * i + 3, VWO, sWO, sWO + 3))
                    vm.issue(tile)
            return True
        if kind == "wq":
            E("s_mov_b32 s10, %d" % (t * NG * 12288))
            vo, sr, fl = 6, sWQ, (" nt" if os.environ.get("WQNT") else "")
        else:
            E("s_mov_b32 s10, %d" % (t * TSTR))
            vo, sr, fl = 5, (sK if kind == "k" else sV), " nt"
        for i in range(3):
            E("buffer_load_dwordx4 v[%d:%d], v%d, s[%d:%d], s10 offen offset:%d%s" % (base + 4 * i, base + 4 * i + 3, vo, sr, sr + 3, 128 * i, fl))
            vm.issue(tile)
        return True
    def release(tile):
        free.append(slot[tile])
        if tile[0] != "wq":
            state["held"] -= 1
    srd(sWO, 24, 7864320)
    srd(sDBG, 38, 256)
    srd(sOUT, 36, 1280)
    E("v_mul_u32_u24 v%d, 205, v0" % TMP[0])
    E("v_lshrrev_b32 v%d, 11, v%d" % (TMP[0], TMP[0]))
    E("v_mul_u32_u24 v%d, 10, v%d" % (TMP[1], TMP[0]))
    E("v_sub_u32 v%d, v0, v%d" % (TMP[1], TMP[1]))
    E("s_mul_i32 s8, s4, 192")
    E("v_add_u32 v%d, s8, v%d" % (VWO, TMP[0]))
    E("v_mul_u32_u24 v%d, 1280, v%d" % (VWO, VWO))
    E("v_lshl_add_u32 v%d, v%d, 4, v%d" % (VWO, TMP[1], VWO))
    E("s_mul_i32 s8, s13, 160")
    E("v_add_u32 v%d, s8, v%d" % (VWO, VWO))
    while issue_next():
        pass
    NV = T0 + 12
    E("s_memrealtime s[98:99]")
    E("s_waitcnt lgkmcnt(0)")
    E("s_or_b32 s98, s98, 1")
    E("v_mov_b32 v%d, s98" % NV)
    E("v_mov_b32 v%d, 0" % (NV + 1))
    E("v_mov_b32 v%d, 0" % TMP[2])
    E("s_cmp_lg_u32 s3, 0")
    E("s_cbranch_scc1 K1_NONONCE")
    E("s_mov_b64 exec, 1")
    E("buffer_atomic_cmpswap v[%d:%d], v%d, s[%d:%d], 0 offen sc0" % (NV, NV + 1, TMP[2], sDBG, sDBG + 3))
    E("s_mov_b64 exec, -1")
    L("K1_NONONCE")
    nonce_mark = vm.total
    vm.wait("x4")
    for i in range(5):
        E("v_lshlrev_b32 v%d, 16, v%d" % (XS[2 * i], XR + i))
        E("v_and_b32 v%d, 0xffff0000, v%d" % (XS[2 * i + 1], XR + i))
    layernorm(XS, TMP, 80, XS)
    layernorm(XS, TMP, 80, HS)
    E("s_mul_i32 s8, s3, 2560")
    E("v_lshl_add_u32 v%d, v1, 3, s8" % TMP[0])
    for i in range(5):
        E("ds_write_b64 v%d, v[%d:%d] offset:%d" % (TMP[0], XS[2 * i], XS[2 * i + 1], XN + 512 * i))
    E("v_add_u32 v%d, %d, v%d" % (TMP[1], HHB, TMP[0]))
    for i in range(5):
        E("ds_write_b64 v%d, v[%d:%d] offset:%d" % (TMP[1], HS[2 * i], HS[2 * i + 1], HH + 512 * i))
    E("s_waitcnt lgkmcnt(0)")
    E("v_lshl_add_u32 v%d, v7, 2, s8" % TMP[0])
    for t in range(NWQ):
        E("ds_read_b32 v%d, v%d offset:%d" % (XNV + t, TMP[0], XN + NG * 4 * t))
    stamp()
    E("s_cmp_ge_u32 s3, 4")
    E("s_cbranch_scc1 K1_NOB")
    E("s_lshl_b32 s9, s2, 2")
    E("s_add_u32 s9, s9, s8")
    E("s_add_u32 s9, s9, %d" % HHB)
    E("v_mov_b32 v%d, s9" % TMP[1])
    HD = HS[0:3]
    E("ds_read_b32 v%d, v%d offset:%d" % (HD[0], TMP[1], HH))
    E("ds_read_b32 v%d, v%d offset:%d" % (HD[1], TMP[1], HH + 1024))
    E("s_cmp_lt_u32 s2, 128")
    E("s_cselect_b32 s11, 2048, 0")
    E("v_add_u32 v%d, s11, v%d" % (TMP[1], TMP[1]))
    E("ds_read_b32 v%d, v%d offset:%d" % (HD[2], TMP[1], HH))
    vm.wait("b2")
    K1c = -2.0 * LOG2E * 0.7978845608028654
    K2c = K1c * 0.044715
    YA = HS[3:6]
    WF = HS[6:9]
    vk1 = HS[9]
    E("v_mov_b32 v%d, %s" % (vk1, fh(K1c)))
    E("s_mov_b32 s12, %s" % fh(K2c))
    for c in range(3):
        E("v_mov_b32 v%d, 0" % YA[c])
    E("s_waitcnt lgkmcnt(0)")
    t0, t1, t2 = TMP[0:3]
    for i in range(3):
        for half in range(2):
            for (dst, src) in ((WF[0], W1R + i), (WF[1], B1R + i), (WF[2], W2R + i)):
                if half == 0:
                    E("v_lshlrev_b32 v%d, 16, v%d" % (dst, src))
                else:
                    E("v_and_b32 v%d, 0xffff0000, v%d" % (dst, src))
            for c in range(3):
                E("v_mul_f32 v%d, v%d, v%d" % (t0, HD[c], WF[0]))
                rb(t0, t0)
                E("v_add_f32 v%d, v%d, v%d" % (t0, t0, WF[1]))
                rb(t0, t0)
                E("v_mul_f32 v%d, v%d, v%d" % (t1, t0, t0))
                E("v_fma_f32 v%d, v%d, s12, v%d" % (t1, t1, vk1))
                E("v_mul_f32 v%d, v%d, v%d" % (t1, t1, t0))
                E("v_exp_f32 v%d, v%d" % (t1, t1))
                E("s_nop 0")
                E("v_add_f32 v%d, 1.0, v%d" % (t1, t1))
                E("v_rcp_f32 v%d, v%d" % (t1, t1))
                E("s_nop 0")
                E("v_mul_f32 v%d, v%d, v%d" % (t1, t1, t0))
                rb(t1, t1)
                E("v_fmac_f32 v%d, v%d, v%d" % (YA[c], t1, WF[2]))
    for c in range(3):
        wave_sum(YA[c], YA[c], 80)
    E("s_mul_i32 s8, s3, 12")
    E("v_mov_b32 v%d, s8" % t0)
    E("s_mov_b64 s[14:15], exec")
    E("s_mov_b64 exec, 1")
    for c in range(3):
        E("ds_write_b32 v%d, v%d offset:%d" % (t0, YA[c], YP + 4 * c))
    E("s_mov_b64 exec, s[14:15]")
    L("K1_NOB")
    E("s_waitcnt lgkmcnt(0)")
    stamp()
    for a in range(24):
        E("v_mov_b32 v%d, 0" % (ACC + a))
    for t in range(NWQ):
        tile = ("wq", t)
        vm.wait(tile)
        gemv_tile(RING + 12 * slot[tile], XNV + t, ACC, TMP[0], TMP[1])
        release(tile)
        issue_next()
    stamp()
    E("v_mul_u32_u24 v%d, 768, v7" % TMP[2])
    E("v_lshl_add_u32 v%d, v3, 5, v%d" % (TMP[2], TMP[2]))
    def red_write():
        for i in range(3):
            E("ds_write_b128 v%d, v[%d:%d] offset:%d" % (TMP[2], ACC + 8 * i, ACC + 8 * i + 3, RED + 256 * i))
            E("ds_write_b128 v%d, v[%d:%d] offset:%d" % (TMP[2], ACC + 8 * i + 4, ACC + 8 * i + 7, RED + 256 * i + 16))
    red_write()
    E("s_cmp_lg_u32 s3, 0")
    E("s_cbranch_scc1 K1_NON2")
    E("s_waitcnt vmcnt(%d)" % min(63, vm.total - nonce_mark))
    E("v_readfirstlane_b32 s99, v%d" % NV)
    E("s_cmp_eq_u32 s99, 0")
    E("s_cselect_b32 s99, s98, s99")
    E("v_mov_b32 v%d, s99" % NV)
    E("v_mov_b32 v%d, 0" % (NV + 1))
    E("ds_write_b32 v%d, v%d offset:%d" % (NV + 1, NV, YP + 256))
    L("K1_NON2")
    E("s_waitcnt lgkmcnt(0)")
    E("s_barrier")
    E("v_mov_b32 v%d, 0" % (NV + 1))
    E("ds_read_b32 v%d, v%d offset:%d" % (NV, NV + 1, YP + 256))
    E("s_waitcnt lgkmcnt(0)")
    E("v_readfirstlane_b32 s99, v%d" % NV)
    E("s_cmp_ge_u32 s3, 3")
    E("s_cbranch_scc1 K1_SKIPQ")
    regs = [ACC + g for g in range(24)] + [SC + g for g in range(8)]
    acc = TMP[0]
    for bt in range(NG // 32):
        for g in range(32):
            E("ds_read_b32 v%d, v9 offset:%d" % (regs[g], RED + 768 * (bt * 32 + g)))
        for g in range(32):
            E("s_waitcnt lgkmcnt(%d)" % min(15, 31 - g))
            if bt == 0 and g == 0:
                E("v_mov_b32 v%d, v%d" % (acc, regs[0]))
            else:
                E("v_add_f32 v%d, v%d, v%d" % (acc, acc, regs[g]))
    E("v_cvt_pk_bf16_f32 v%d, v%d, v%d" % (acc, acc, acc))
    E("v_lshlrev_b32 v%d, 1, v0" % TMP[1])
    E("ds_write_b16 v%d, v%d offset:%d" % (TMP[1], acc, QB))
    E("s_branch K1_SKIPB")
    L("K1_SKIPQ")
    E("s_cmp_lg_u32 s3, 3")
    E("s_cbranch_scc1 K1_SKIPB")
    Y = ACC
    for w in range(4):
        E("ds_read_b32 v%d, v8 offset:%d" % (Y + w, YP + 12 * w))
    E("s_waitcnt lgkmcnt(0)")
    y = Y
    for w in range(1, 4):
        E("v_add_f32 v%d, v%d, v%d" % (y, y, Y + w))
    rb(y, y)
    E("v_lshlrev_b32 v%d, 16, v%d" % (B2R, B2R))
    E("v_add_f32 v%d, v%d, v%d" % (y, y, B2R))
    rb(y, y)
    E("v_mul_f32 v%d, %s, v%d" % (Y + 1, fh(-LOG2E), y))
    E("v_exp_f32 v%d, v%d" % (Y + 1, Y + 1))
    E("s_nop 0")
    E("v_add_f32 v%d, 1.0, v%d" % (Y + 1, Y + 1))
    E("v_rcp_f32 v%d, v%d" % (Y + 1, Y + 1))
    E("s_nop 0")
    E("v_mul_f32 v%d, v%d, v%d" % (y, y, Y + 1))
    rb(y, y)
    E("s_cmp_lt_u32 s2, 128")
    E("s_cselect_b32 s8, 7, 3")
    E("s_mov_b32 s9, 0")
    E("s_mov_b64 s[14:15], exec")
    E("s_mov_b64 exec, s[8:9]")
    E("v_lshlrev_b32 v%d, 11, v1" % (Y + 2))
    E("s_lshl_b32 s8, s2, 3")
    E("s_add_u32 s8, s8, %d" % G_OFF)
    E("v_add_u32 v%d, s8, v%d" % (Y + 2, Y + 2))
    E("v_mov_b32 v%d, s99" % (Y + 1))
    E("buffer_store_dwordx2 v[%d:%d], v%d, s[%d:%d], 0 offen sc1" % (y, y + 1, Y + 2, sWS, sWS + 3))
    E("s_mov_b64 exec, s[14:15]")
    L("K1_SKIPB")
    E("s_waitcnt lgkmcnt(0)")
    E("s_barrier")
    E("v_lshlrev_b32 v%d, 4, v3" % TMP[0])
    for i in range(3):
        E("ds_read_b128 v[%d:%d], v%d offset:%d" % (QF + 4 * i, QF + 4 * i + 3, TMP[0], QB + 128 * i))
    E("s_waitcnt lgkmcnt(0)")
    stamp()
    scale = 192 ** -0.5
    for t in range(NKV):
        tile = ("k", t)
        vm.wait(tile)
        base = RING + 12 * slot[tile]
        a = TMP[0]
        E("v_dot2_f32_bf16 v%d, v%d, v%d, 0" % (a, base, QF))
        for k in range(1, 12):
            E("v_dot2_f32_bf16 v%d, v%d, v%d, v%d" % (a, base + k, QF + k, a))
        release(tile)
        if not issue_next():
            E("s_nop 2")
        E("v_add_f32_dpp v%d, v%d, v%d quad_perm:[1,0,3,2] row_mask:0xf bank_mask:0xf" % (a, a, a))
        E("s_nop 1")
        E("v_add_f32_dpp v%d, v%d, v%d quad_perm:[2,3,0,1] row_mask:0xf bank_mask:0xf" % (a, a, a))
        E("s_nop 1")
        E("v_add_f32_dpp v%d, v%d, v%d row_half_mirror row_mask:0xf bank_mask:0xf" % (a, a, a))
        rb(a, a)
        E("v_mul_f32 v%d, %s, v%d" % (a, fh(scale), a))
        rb(SC + t, a)
    stamp()
    vmx, vl = TMP[4], TMP[5]
    E("v_max_f32 v%d, v%d, v%d" % (vmx, SC, SC + 1))
    for t in range(2, NKV):
        E("v_max_f32 v%d, v%d, v%d" % (vmx, vmx, SC + t))
    for t in range(NKV):
        E("v_sub_f32 v%d, v%d, v%d" % (SC + t, SC + t, vmx))
        E("v_mul_f32 v%d, %s, v%d" % (SC + t, fh(LOG2E), SC + t))
        E("v_exp_f32 v%d, v%d" % (SC + t, SC + t))
    E("s_nop 0")
    E("v_add_f32 v%d, v%d, v%d" % (vl, SC, SC + 1))
    for t in range(2, NKV):
        E("v_add_f32 v%d, v%d, v%d" % (vl, vl, SC + t))
    for a in range(24):
        E("v_mov_b32 v%d, 0" % (ACC + a))
    for t in range(NKV):
        tile = ("v", t)
        vm.wait(tile)
        gemv_tile(RING + 12 * slot[tile], SC + t, ACC, TMP[0], TMP[1])
        release(tile)
        issue_next()
    stamp()
    red_write()
    E("v_lshlrev_b32 v%d, 3, v7" % TMP[0])
    E("ds_write_b64 v%d, v[%d:%d] offset:%d" % (TMP[0], vmx, vl, ML))
    E("s_waitcnt lgkmcnt(0)")
    E("s_barrier")
    E("s_cmp_ge_u32 s3, 3")
    E("s_cbranch_scc1 K1_PUB")
    AR = ACC
    MLV = TMP[4]
    E("v_lshlrev_b32 v%d, 3, v1" % TMP[0])
    if NG == 32:
        E("v_and_b32 v%d, 0xff, v%d" % (TMP[0], TMP[0]))
    E("ds_read_b64 v[%d:%d], v%d offset:%d" % (MLV, MLV + 1, TMP[0], ML))
    for g in range(32):
        E("ds_read_b32 v%d, v9 offset:%d" % (AR + g, RED + 768 * g))
    E("s_waitcnt lgkmcnt(15)")
    M, LS = TMP[6], TMP[7]
    wave_max(MLV, M, 80)
    E("v_sub_f32 v%d, v%d, v%d" % (MLV, MLV, M))
    E("v_mul_f32 v%d, %s, v%d" % (MLV, fh(LOG2E), MLV))
    E("v_exp_f32 v%d, v%d" % (MLV, MLV))
    E("s_nop 0")
    E("v_mul_f32 v%d, v%d, v%d" % (MLV + 1, MLV, MLV + 1))
    wave_sum(MLV + 1, LS, 80)
    if NG == 32:
        E("v_mul_f32 v%d, 0.5, v%d" % (LS, LS))
    O = TMP[1]
    E("v_mov_b32 v%d, 0" % O)
    E("s_waitcnt lgkmcnt(0)")
    for g0 in range(0, NG, 4):
        if g0 == 32:
            for g in range(32):
                E("ds_read_b32 v%d, v9 offset:%d" % (AR + g, RED + 768 * (32 + g)))
            E("s_waitcnt lgkmcnt(0)")
        for i in range(4):
            E("v_readlane_b32 s%d, v%d, %d" % (80 + i, MLV, g0 + i))
        E("s_nop 0")
        for i in range(4):
            E("v_fmac_f32 v%d, s%d, v%d" % (O, 80 + i, AR + g0 % 32 + i))
    E("v_mov_b32 v%d, v%d" % (TMP[0], O))
    E("v_mov_b32 v%d, s99" % TMP[1])
    E("s_lshl_b32 s8, s4, 3")
    E("s_add_u32 s8, s8, s13")
    E("s_lshl_b32 s8, s8, 11")
    E("v_lshl_add_u32 v%d, v0, 3, s8" % TMP[2])
    E("buffer_store_dwordx2 v[%d:%d], v%d, s[%d:%d], 0 offen sc1" % (TMP[0], TMP[1], TMP[2], sWS, sWS + 3))
    E("v_mov_b32 v%d, v%d" % (TMP[4], M))
    E("v_mov_b32 v%d, s99" % TMP[5])
    E("v_mov_b32 v%d, v%d" % (TMP[6], LS))
    E("v_mov_b32 v%d, s99" % TMP[7])
    E("v_mov_b32 v%d, s8" % TMP[3])
    E("s_cmp_lg_u32 s3, 0")
    E("s_cbranch_scc1 K1_NOML")
    E("s_mov_b64 exec, 1")
    E("buffer_store_dwordx4 v[%d:%d], v%d, s[%d:%d], 0 offen offset:1536 sc1" % (TMP[4], TMP[7], TMP[3], sWS, sWS + 3))
    E("s_mov_b64 exec, -1")
    L("K1_NOML")
    stamp()
    OP = ACC
    MLP = ACC + 16
    E("s_lshl_b32 s8, s4, 14")
    E("v_lshl_add_u32 v%d, v0, 3, s8" % TMP[0])
    E("v_mov_b32 v%d, s8" % TMP[1])
    E("s_mov_b32 s9, 0")
    L("K1_POLL")
    for sp in range(8):
        E("s_mov_b32 s10, %d" % (sp * 2048))
        E("buffer_load_dwordx4 v[%d:%d], v%d, s[%d:%d], s10 offen offset:1536 sc1" % (MLP + 4 * sp, MLP + 4 * sp + 3, TMP[1], sWS, sWS + 3))
        E("buffer_load_dwordx2 v[%d:%d], v%d, s[%d:%d], s10 offen sc1" % (OP + 2 * sp, OP + 2 * sp + 1, TMP[0], sWS, sWS + 3))
    E("s_waitcnt vmcnt(0)")
    E("v_xor_b32 v%d, s99, v%d" % (TMP[2], OP + 1))
    for sp in range(8):
        for r_ in ([OP + 2 * sp + 1] if sp else []) + [MLP + 4 * sp + 1, MLP + 4 * sp + 3]:
            E("v_xor_b32 v%d, s99, v%d" % (TMP[3], r_))
            E("v_or_b32 v%d, v%d, v%d" % (TMP[2], TMP[2], TMP[3]))
    E("v_cmp_ne_u32 vcc, 0, v%d" % TMP[2])
    E("s_add_u32 s9, s9, 1")
    E("s_cmp_ge_u32 s9, 0x40000")
    E("s_cbranch_scc1 K1_POLLED")
    E("s_cbranch_vccz K1_POLLED")
    E("s_sleep 1")
    E("s_branch K1_POLL")
    L("K1_POLLED")
    stamp()
    M, O, LS, T = TMP[2], TMP[3], TMP[4], TMP[5]
    E("v_max_f32 v%d, v%d, v%d" % (M, MLP, MLP + 4))
    for sp in range(2, 8):
        E("v_max_f32 v%d, v%d, v%d" % (M, M, MLP + 4 * sp))
    E("v_mov_b32 v%d, 0" % O)
    E("v_mov_b32 v%d, 0" % LS)
    for sp in range(8):
        E("v_sub_f32 v%d, v%d, v%d" % (MLP + 4 * sp, MLP + 4 * sp, M))
        E("v_mul_f32 v%d, %s, v%d" % (MLP + 4 * sp, fh(LOG2E), MLP + 4 * sp))
        E("v_exp_f32 v%d, v%d" % (MLP + 4 * sp, MLP + 4 * sp))
    E("s_nop 0")
    for sp in range(8):
        E("v_fmac_f32 v%d, v%d, v%d" % (O, MLP + 4 * sp, OP + 2 * sp))
        E("v_fmac_f32 v%d, v%d, v%d" % (LS, MLP + 4 * sp, MLP + 4 * sp + 2))
    E("v_rcp_f32 v%d, v%d" % (T, LS))
    E("s_nop 0")
    E("v_mul_f32 v%d, v%d, v%d" % (M, O, T))
    E("v_fma_f32 v%d, -v%d, v%d, v%d" % (O, M, LS, O))
    E("v_fma_f32 v%d, v%d, v%d, v%d" % (M, O, T, M))
    rb(M, M)
    OL = XN
    R2 = RED
    E("ds_write_b32 v9, v%d offset:%d" % (M, OL))
    L("K1_PUB")
    vm.drain()
    E("s_waitcnt lgkmcnt(0)")
    E("s_barrier")
    E("v_mul_u32_u24 v%d, 205, v0" % TMP[0])
    E("v_lshrrev_b32 v%d, 11, v%d" % (TMP[0], TMP[0]))
    E("v_mul_u32_u24 v%d, 10, v%d" % (TMP[1], TMP[0]))
    E("v_sub_u32 v%d, v0, v%d" % (TMP[1], TMP[1]))
    E("v_lshlrev_b32 v%d, 2, v%d" % (TMP[2], TMP[0]))
    OV = ACC
    for p in range(NPASS):
        E("ds_read_b32 v%d, v%d offset:%d" % (OV + p, TMP[2], OL + 4 * RPP * p))
    AC = ACC + 8
    for a in range(8):
        E("v_mov_b32 v%d, 0" % (AC + a))
    E("s_waitcnt lgkmcnt(0)")
    for p in range(NPASS):
        base = RING + 12 * slot[("wo", p // 3)] + 4 * (p % 3)
        for k in range(4):
            E("v_lshlrev_b32 v%d, 16, v%d" % (TMP[3], base + k))
            E("v_and_b32 v%d, 0xffff0000, v%d" % (TMP[4], base + k))
            E("v_fmac_f32 v%d, v%d, v%d" % (AC + 2 * k, OV + p, TMP[3]))
            E("v_fmac_f32 v%d, v%d, v%d" % (AC + 2 * k + 1, OV + p, TMP[4]))
    E("v_mul_u32_u24 v%d, 320, v%d" % (TMP[2], TMP[0]))
    E("v_lshl_add_u32 v%d, v%d, 5, v%d" % (TMP[2], TMP[1], TMP[2]))
    E("ds_write_b128 v%d, v[%d:%d] offset:%d" % (TMP[2], AC, AC + 3, R2))
    E("ds_write_b128 v%d, v[%d:%d] offset:%d" % (TMP[2], AC + 4, AC + 7, R2 + 16))
    E("s_waitcnt lgkmcnt(0)")
    E("s_barrier")
    E("s_cmp_lg_u32 s3, 0")
    E("s_cbranch_scc1 K1_END")
    E("s_mov_b32 s8, -1")
    E("s_mov_b32 s9, 0xff")
    E("s_mov_b64 exec, s[8:9]")
    E("v_lshlrev_b32 v%d, 3, v1" % TMP[0])
    RR = RING
    for g in range(RPP):
        E("ds_read_b64 v[%d:%d], v%d offset:%d" % (RR + 2 * g, RR + 2 * g + 1, TMP[0], R2 + 320 * g))
    E("s_waitcnt lgkmcnt(0)")
    for g in range(1, RPP):
        E("v_add_f32 v%d, v%d, v%d" % (RR, RR, RR + 2 * g))
        E("v_add_f32 v%d, v%d, v%d" % (RR + 1, RR + 1, RR + 2 * g + 1))
    E("v_mov_b32 v%d, v%d" % (RR + 2, RR + 1))
    E("v_mov_b32 v%d, s99" % (RR + 1))
    E("v_mov_b32 v%d, s99" % (RR + 3))
    E("s_lshl_b32 s8, s13, 5")
    E("s_add_u32 s8, s8, s4")
    E("s_lshl_b32 s8, s8, 10")
    E("s_add_u32 s8, s8, %d" % SP_OFF)
    E("v_lshl_add_u32 v%d, v1, 4, s8" % TMP[1])
    E("buffer_store_dwordx4 v[%d:%d], v%d, s[%d:%d], 0 offen sc1" % (RR, RR + 3, TMP[1], sWS, sWS + 3))
    E("s_cmp_lg_u32 s4, 0")
    E("s_cbranch_scc1 K1_FIN")
    E("s_lshl_b32 s8, s13, 15")
    E("s_add_u32 s8, s8, %d" % SP_OFF)
    E("v_lshl_add_u32 v%d, v1, 4, s8" % TMP[1])
    E("s_mul_i32 s8, s13, 640")
    E("s_add_u32 s8, s8, %d" % G_OFF)
    E("v_lshl_add_u32 v%d, v1, 4, s8" % TMP[3])
    E("s_mul_i32 s8, s13, 160")
    E("v_lshlrev_b32 v%d, 2, v1" % TMP[2])
    E("v_add_u32 v%d, s8, v%d" % (TMP[2], TMP[2]))
    XV = TMP[8]
    GV = TMP[4]
    E("buffer_load_dword v%d, v%d, s[%d:%d], 0 offen" % (XV, TMP[2], sX, sX + 3))
    E("s_mov_b32 s9, 0")
    L("K1_POLL2")
    for g in range(32):
        E("s_mov_b32 s10, %d" % (g * 1024))
        E("buffer_load_dwordx4 v[%d:%d], v%d, s[%d:%d], s10 offen sc1" % (RR + 4 * g, RR + 4 * g + 3, TMP[1], sWS, sWS + 3))
    E("buffer_load_dwordx4 v[%d:%d], v%d, s[%d:%d], 0 offen sc1" % (GV, GV + 3, TMP[3], sWS, sWS + 3))
    E("s_waitcnt vmcnt(0)")
    E("v_xor_b32 v%d, s99, v%d" % (ACC, GV + 1))
    for r_ in [GV + 3] + [RR + 4 * g + e for g in range(32) for e in (1, 3)]:
        E("v_xor_b32 v%d, s99, v%d" % (ACC + 1, r_))
        E("v_or_b32 v%d, v%d, v%d" % (ACC, ACC, ACC + 1))
    E("v_cmp_ne_u32 vcc, 0, v%d" % ACC)
    E("s_add_u32 s9, s9, 1")
    E("s_cmp_ge_u32 s9, 0x40000")
    E("s_cbranch_scc1 K1_POLLED2")
    E("s_cbranch_vccz K1_POLLED2")
    E("s_sleep 1")
    E("s_branch K1_POLL2")
    L("K1_POLLED2")
    for g in range(1, 32):
        E("v_add_f32 v%d, v%d, v%d" % (RR, RR, RR + 4 * g))
        E("v_add_f32 v%d, v%d, v%d" % (RR + 2, RR + 2, RR + 4 * g + 2))
    E("v_and_b32 v%d, 0xffff0000, v%d" % (XV + 1, XV))
    E("v_lshlrev_b32 v%d, 16, v%d" % (XV, XV))
    for e in range(2):
        rb(RR + 2 * e, RR + 2 * e)
        E("v_mul_f32 v%d, v%d, v%d" % (RR + 2 * e, RR + 2 * e, GV + 2 * e))
        rb(RR + 2 * e, RR + 2 * e)
        E("v_add_f32 v%d, v%d, v%d" % (RR + 2 * e, RR + 2 * e, XV + e))
    E("v_cvt_pk_bf16_f32 v%d, v%d, v%d" % (RR, RR, RR + 2))
    E("buffer_store_dword v%d, v%d, s[%d:%d], 0 offen" % (RR, TMP[2], sOUT, sOUT + 3))
    L("K1_FIN")
    E("s_mov_b64 exec, -1")
    stamp()
    stamp_flush()
    L("K1_END")
    E("s_endpgm")

def kernel2():
    vm = VM()
    L(NAME + "_k2_kernel")
    E("s_cmp_ge_u32 s2, 320")
    E("s_cbranch_scc1 K2_END")
    if os.environ.get("OST"): E("s_memrealtime s[90:91]")
    E("s_load_dwordx16 s[16:31], s[0:1], 0")
    E("s_load_dwordx8 s[32:39], s[0:1], 64")
    E("s_load_dwordx2 s[40:41], s[0:1], 96")
    E("s_mov_b32 s5, 429496730")
    E("s_mul_hi_u32 s4, s2, s5")
    E("s_mul_i32 s5, s4, 10")
    E("s_sub_u32 s5, s2, s5")
    E("v_lshrrev_b32 v4, 6, v0")
    E("s_nop 0")
    E("v_readfirstlane_b32 s3, v4")
    E("v_lshrrev_b32 v2, 3, v0")
    E("v_and_b32 v3, 7, v0")
    E("v_lshlrev_b32 v9, 2, v0")
    E("s_waitcnt lgkmcnt(0)")
    sX, sWO, sOUT, sDBG, sWS = 44, 48, 52, 56, 60
    srd(sX, 16, 1280)
    srd(sWO, 24, 7864320)
    srd(sOUT, 36, 1280)
    srd(sDBG, 38, 256)
    srd(sWS, 40, WS_BYTES)
    E("s_lshl_b32 s8, s4, 13")
    E("v_add_u32 v5, s8, v9")
    E("v_mov_b32 v6, s8")
    OP = 10
    MLP = 18
    for s in range(8):
        E("buffer_load_dwordx2 v[%d:%d], v6, s[%d:%d], 0 offen offset:%d" % (MLP + 2 * s, MLP + 2 * s + 1, sWS, sWS + 3, 768))
        vm.issue("ml")
        E("buffer_load_dword v%d, v5, s[%d:%d], 0 offen" % (OP + s, sWS, sWS + 3))
        vm.issue("op")
        if s < 7:
            E("v_add_u32 v5, 1024, v5")
            E("v_add_u32 v6, 1024, v6")
    E("s_mul_i32 s8, s4, 192")
    E("v_add_u32 v7, s8, v2")
    E("v_mul_u32_u24 v7, 1280, v7")
    E("v_lshl_add_u32 v7, v3, 4, v7")
    E("s_lshl_b32 s8, s5, 7")
    E("v_add_u32 v7, s8, v7")
    WOR = 40
    for p in range(6):
        E("s_mov_b32 s10, %d" % (p * 40960))
        E("buffer_load_dwordx4 v[%d:%d], v7, s[%d:%d], s10 offen nt" % (WOR + 4 * p, WOR + 4 * p + 3, sWO, sWO + 3))
        vm.issue("wo%d" % p)
    vm.wait("op")
    M, O, LS, T = 34, 35, 36, 37
    E("v_max_f32 v%d, v%d, v%d" % (M, MLP, MLP + 2))
    for s in range(2, 8):
        E("v_max_f32 v%d, v%d, v%d" % (M, M, MLP + 2 * s))
    E("v_mov_b32 v%d, 0" % O)
    E("v_mov_b32 v%d, 0" % LS)
    for s in range(8):
        E("v_sub_f32 v%d, v%d, v%d" % (MLP + 2 * s, MLP + 2 * s, M))
        E("v_mul_f32 v%d, %s, v%d" % (MLP + 2 * s, fh(LOG2E), MLP + 2 * s))
        E("v_exp_f32 v%d, v%d" % (MLP + 2 * s, MLP + 2 * s))
    E("s_nop 0")
    for s in range(8):
        E("v_fmac_f32 v%d, v%d, v%d" % (O, MLP + 2 * s, OP + s))
        E("v_fmac_f32 v%d, v%d, v%d" % (LS, MLP + 2 * s, MLP + 2 * s + 1))
    E("v_rcp_f32 v%d, v%d" % (T, LS))
    E("s_nop 0")
    E("v_mul_f32 v%d, v%d, v%d" % (M, O, T))
    E("v_fma_f32 v%d, -v%d, v%d, v%d" % (O, M, LS, O))
    E("v_fma_f32 v%d, v%d, v%d, v%d" % (M, O, T, M))
    rb(M, M)
    E("ds_write_b32 v9, v%d" % M)
    E("s_waitcnt lgkmcnt(0)")
    E("s_barrier")
    E("v_lshlrev_b32 v8, 2, v2")
    OV = 10
    for p in range(6):
        E("ds_read_b32 v%d, v8 offset:%d" % (OV + p, 128 * p))
    AC = 20
    for a in range(8):
        E("v_mov_b32 v%d, 0" % (AC + a))
    E("s_waitcnt lgkmcnt(0)")
    for p in range(6):
        vm.wait("wo%d" % p)
        for k in range(4):
            E("v_lshlrev_b32 v%d, 16, v%d" % (T, WOR + 4 * p + k))
            E("v_and_b32 v%d, 0xffff0000, v%d" % (T + 1, WOR + 4 * p + k))
            E("v_fmac_f32 v%d, v%d, v%d" % (AC + 2 * k, OV + p, T))
            E("v_fmac_f32 v%d, v%d, v%d" % (AC + 2 * k + 1, OV + p, T + 1))
    E("v_lshlrev_b32 v8, 8, v2")
    E("v_lshl_add_u32 v8, v3, 5, v8")
    E("ds_write_b128 v8, v[%d:%d] offset:1024" % (AC, AC + 3))
    E("ds_write_b128 v8, v[%d:%d] offset:1040" % (AC + 4, AC + 7))
    E("s_waitcnt lgkmcnt(0)")
    E("s_barrier")
    E("s_cmp_lg_u32 s3, 0")
    E("s_cbranch_scc1 K2_END")
    RR = 64
    for g in range(32):
        E("ds_read_b32 v%d, v9 offset:%d" % (RR + g, 1024 + 256 * g))
    E("s_waitcnt lgkmcnt(0)")
    for g in range(1, 32):
        E("v_add_f32 v%d, v%d, v%d" % (RR, RR, RR + g))
    E("s_lshl_b32 s8, s5, 5")
    E("s_add_u32 s8, s8, s4")
    E("s_lshl_b32 s8, s8, 8")
    E("s_add_u32 s8, s8, %d" % SP_OFF)
    E("v_add_u32 v8, s8, v9")
    E("buffer_store_dword v%d, v8, s[%d:%d], 0 offen sc1" % (RR, sWS, sWS + 3))
    E("s_waitcnt vmcnt(0)")
    E("s_lshl_b32 s8, s5, 2")
    E("v_mov_b32 v8, s8")
    E("v_mov_b32 v10, 1")
    E("s_mov_b64 s[14:15], exec")
    E("s_mov_b64 exec, 1")
    E("buffer_atomic_add v10, v8, s[%d:%d], 0 offen sc0" % (sDBG, sDBG + 3))
    E("s_waitcnt vmcnt(0)")
    E("s_mov_b64 exec, s[14:15]")
    E("v_readfirstlane_b32 s8, v10")
    E("s_cmp_lg_u32 s8, 31")
    E("s_cbranch_scc1 K2_END")
    E("s_lshl_b32 s8, s5, 13")
    E("s_add_u32 s8, s8, %d" % SP_OFF)
    E("v_add_u32 v8, s8, v9")
    for g in range(32):
        if g % 16 == 0 and g:
            E("v_add_u32 v8, 4096, v8")
        E("buffer_load_dword v%d, v8, s[%d:%d], 0 offen offset:%d sc1" % (RR + g, sWS, sWS + 3, 256 * (g % 16)))
    E("s_lshl_b32 s8, s5, 8")
    E("s_add_u32 s9, s8, %d" % G_OFF)
    E("v_add_u32 v10, s9, v9")
    E("buffer_load_dword v11, v10, s[%d:%d], 0 offen" % (sWS, sWS + 3))
    E("s_lshl_b32 s8, s5, 7")
    E("v_lshlrev_b32 v12, 1, v0")
    E("v_add_u32 v12, s8, v12")
    E("buffer_load_ushort v13, v12, s[%d:%d], 0 offen" % (sX, sX + 3))
    E("s_waitcnt vmcnt(0)")
    for g in range(1, 32):
        E("v_add_f32 v%d, v%d, v%d" % (RR, RR, RR + g))
    rb(RR, RR)
    E("v_mul_f32 v%d, v%d, v11" % (RR, RR))
    rb(RR, RR)
    E("v_lshlrev_b32 v13, 16, v13")
    E("v_add_f32 v%d, v%d, v13" % (RR, RR))
    E("v_cvt_pk_bf16_f32 v%d, v%d, v%d" % (RR, RR, RR))
    E("buffer_store_short v%d, v12, s[%d:%d], 0 offen" % (RR, sOUT, sOUT + 3))
    if os.environ.get("OST"):
        E("s_cmp_lg_u32 s5, 0"); E("s_cbranch_scc1 K2_END")
        E("s_memrealtime s[92:93]")
        E("v_mov_b32 v2, 0x100000")
        E("buffer_load_dwordx4 v[20:23], v2, s[60:63], 0 offen")
        E("buffer_load_dwordx4 v[24:27], v2, s[60:63], 0 offen offset:16")
        E("s_waitcnt vmcnt(0) lgkmcnt(0)")
        E("v_sub_u32 v30, v21, v20")
        E("v_sub_u32 v31, v24, v20")
        E("v_sub_u32 v32, v26, v20")
        E("v_sub_u32 v33, v27, v20")
        E("v_sub_u32 v34, s90, v20")
        E("v_sub_u32 v35, s92, v20")
        E("v_mov_b32 v2, 40")
        E("s_mov_b64 exec, 1")
        E("buffer_store_dwordx4 v[30:33], v2, s[56:59], 0 offen")
        E("buffer_store_dwordx2 v[34:35], v2, s[56:59], 0 offen offset:16")
    L("K2_END")
    E("s_endpgm")

hdr = open("cdna_kernels/%s.s.ref" % NAME).read().split("\n")
head = [l for l in hdr if l.startswith(";") and "@launch" not in l and "Override launch" not in l and "grid=ceil" not in l]
head = head[:15]
src = "\n".join(head) + "\n"
src += "; @launch grid=(256,1,1) block=(%d,1,1) lds=%d\n" % (NW * 64, LDS1)
src += '.amdgcn_target "amdgcn-amd-amdhsa--gfx950"\n.text\n'
kn = NAME + "_kernel"
out.clear()
kernel1()
src += ".globl %s\n.p2align 8\n.type %s,@function\n" % (kn, kn) + "\n".join(out) + "\n"
src += '.section .rodata,"a"\n'
src += """.p2align 6
.amdhsa_kernel %s
  .amdhsa_next_free_vgpr 256
  .amdhsa_next_free_sgpr 102
  .amdhsa_accum_offset 256
  .amdhsa_group_segment_fixed_size 0
  .amdhsa_kernarg_size 104
  .amdhsa_user_sgpr_count 2
  .amdhsa_user_sgpr_kernarg_segment_ptr 1
  .amdhsa_system_sgpr_workgroup_id_x 1
.end_amdhsa_kernel
""" % kn
open(sys.argv[1] if len(sys.argv) > 1 else "cdna_kernels/%s.s" % NAME, "w").write(src)
```
